```python
import torch

def _softmax(x, axis=-1):
    return torch.softmax(x, dim=axis)
def _gelu(x):
    return torch.nn.functional.gelu(x, approximate="tanh")
def _silu(x):
    return torch.nn.functional.silu(x)
def _sigmoid(x):
    return torch.sigmoid(x)
def _layernorm(x, axis=-1, eps=1e-5):
    m = x.mean(dim=axis, keepdim=True)
    v = x.var(dim=axis, keepdim=True, unbiased=False)
    return (x - m) / torch.sqrt(v + eps)
def _scatter_add(tgt, idx, src, axis=0):
    return tgt.clone().index_add_(axis, idx, src)
def _segment_sum(src, seg, n):
    out = torch.zeros((n,) + src.shape[1:], dtype=src.dtype)
    return out.index_add_(0, seg, src)
def _pad(x, pw):
    flat = tuple(v for pair in reversed(pw) for v in pair)
    return torch.nn.functional.pad(x, flat)

kernel_name = 'sequential_preLN__linear_kernel_hedgehog__geglu_ffn__prompt'

def setup_inputs():

    _w = (lambda a: (lambda t: t.to(torch.bfloat16) if t.is_floating_point() else t)(torch.as_tensor(a)))
    def _A_setup():
        B, S, D, H = 1, 2048, 576, 32
        Dh = D // H
        return {
            "x": _w((lambda *s: torch.randn(*s, dtype=torch.bfloat16) * 0.05)(B, S, D)),
            "wqkv": _w((lambda *s: torch.randn(*s, dtype=torch.bfloat16) * 0.2)(D, 3 * D)),
            "w_phi": _w((lambda *s: torch.randn(*s, dtype=torch.bfloat16) * 0.2)(H, Dh, Dh) * (Dh ** -0.5)),
            "wo": _w((lambda *s: torch.randn(*s, dtype=torch.bfloat16) * 0.05)(D, D)),
        }
    _A_in = _A_setup()

    def _B_setup():
        B, S, D, F = 1, 2048, 576, 4608
        return {
            "x": _w((lambda *s: torch.randn(*s, dtype=torch.bfloat16) * 0.05)(B, S, D)),
            "w_gate": _w((lambda *s: torch.randn(*s, dtype=torch.bfloat16) * 0.05)(D, F)),
            "w_up": _w((lambda *s: torch.randn(*s, dtype=torch.bfloat16) * 0.05)(D, F)),
            "w_down": _w((lambda *s: torch.randn(*s, dtype=torch.bfloat16) * 0.05)(F, D)),
        }
    _B_in = _B_setup()

    return {
        "A_x": _A_in["x"],
        "A_wqkv": _A_in["wqkv"],
        "A_w_phi": _A_in["w_phi"],
        "A_wo": _A_in["wo"],
        "B_x": _B_in["x"],
        "B_w_gate": _B_in["w_gate"],
        "B_w_up": _B_in["w_up"],
        "B_w_down": _B_in["w_down"],
    }

def reference(A_x, A_wqkv, A_w_phi, A_wo, B_x, B_w_gate, B_w_up, B_w_down):
    def _A_ref(x, wqkv, w_phi, wo):
        B, S, D = x.shape
        H = 32; Dh = D // H
        qkv = (lambda x, *d: x.permute(*d))((x @ wqkv).reshape(B, S, 3, H, Dh), 2, 0, 3, 1, 4)
        q, k, v = qkv[0], qkv[1], qkv[2]
        pq = torch.einsum("bhsd,hdf->bhsf", q, w_phi)
        pk = torch.einsum("bhsd,hdf->bhsf", k, w_phi)
        phi_q = torch.concatenate([_softmax(pq, axis=-1), _softmax(-pq, axis=-1)], axis=-1)
        phi_k = torch.concatenate([_softmax(pk, axis=-1), _softmax(-pk, axis=-1)], axis=-1)
        kv = torch.einsum("bhsf,bhsd->bhfd", phi_k, v)
        z  = torch.einsum("bhsf->bhf", phi_k)
        num = torch.einsum("bhqf,bhfd->bhqd", phi_q, kv)
        den = torch.einsum("bhqf,bhf->bhq", phi_q, z)[..., None] + 1e-6
        o = num / den
        return (lambda x, *d: x.permute(*d))(o, 0, 2, 1, 3).reshape(B, S, D) @ wo

    def _B_ref(x, w_gate, w_up, w_down):
        return (_gelu(x @ w_gate) * (x @ w_up)) @ w_down

    x = A_x
    h = x + _A_ref(_layernorm(x, axis=-1), A_wqkv, A_w_phi, A_wo)
    h2 = h + _B_ref(_layernorm(h, axis=-1), B_w_gate, B_w_up, B_w_down)
    return h2
```

```python
import re
class Asm:
    def __init__(self):
        self.lines = []
        self.nlabel = 0
    def __call__(self, s=""):
        for l in s.split("\n"):
            self.lines.append(l)
    def e(self, s):
        m = re.search(r"offset:(-?\d+)", s)
        if m:
            o = int(m.group(1)); op = s.split()[0]
            if op.startswith("buffer_"): assert 0 <= o <= 4095, s
            elif op.startswith("global_"): assert -4096 <= o <= 4095, s
            elif op.startswith("ds_"): assert 0 <= o <= 65535, s
        m = re.search(r"vmcnt\((\d+)\)", s)
        if m: assert int(m.group(1)) <= 63, s
        m = re.search(r"lgkmcnt\((\d+)\)", s)
        if m: assert int(m.group(1)) <= 15, s
        self.lines.append("    " + s)
    def label(self, name):
        self.lines.append(name + ":")
    def newlabel(self, p="L"):
        self.nlabel += 1
        return f"{p}_{self.nlabel}"
    def c(self, s):
        self.lines.append("    ; " + s)
    def text(self):
        return "\n".join(self.lines) + "\n"

def vr(b, n=1):
    return f"v{b}" if n == 1 else f"v[{b}:{b+n-1}]"
def ar(b, n=1):
    return f"a{b}" if n == 1 else f"a[{b}:{b+n-1}]"
def sr(b, n=1):
    return f"s{b}" if n == 1 else f"s[{b}:{b+n-1}]"

HEADER = """; Kernarg layout for this problem (88 bytes, ptrs only, base s[0:1]):
"""

def kernel_begin(a, name):
    a(f".globl {name}")
    a(".p2align 8")
    a(f".type {name},@function")
    a(f"{name}:")

def kernel_desc(name, vgpr, sgpr=96, accum=None, wgy=False):
    if accum is None:
        accum = (min(vgpr,256) + 3)//4*4
    s = f""".amdhsa_kernel {name}
  .amdhsa_next_free_vgpr {vgpr}
  .amdhsa_next_free_sgpr {sgpr}
  .amdhsa_accum_offset {accum}
  .amdhsa_group_segment_fixed_size 0
  .amdhsa_kernarg_size 88
  .amdhsa_user_sgpr_count 2
  .amdhsa_user_sgpr_kernarg_segment_ptr 1
  .amdhsa_system_sgpr_workgroup_id_x 1
"""
    if wgy:
        s += "  .amdhsa_system_sgpr_workgroup_id_y 1\n"
    s += ".end_amdhsa_kernel\n"
    return s
```

```python
S, D, H, DH, F = 2048, 576, 32, 18, 4608
WS_W    = 0x0000000
SPLIT_BYTES = 1944*1024
WS_W_BYTES = 8*SPLIT_BYTES
WS_H    = 0x1000000
WS_H_BYTES = S*D*2
WS_P    = 0x1400000
P_BLK = 73728
WS_P_BYTES = 8*32*P_BLK
WS_TS   = 0x8000000

def wavebase(w):
    return (w*252 if w < 4 else 4*252 + (w-4)*234)*1024
def nt_of(w):
    return 5 if w < 4 else 4

def sigma_to_f():
    out = []
    for s in range(576):
        w, rem = divmod(s, 72)
        if rem < 32:
            gp, i, r = rem//8, (rem%8)//2, rem%2
        elif rem < 64:
            gp, i, r = (rem-32)//8, 4+((rem-32)%8)//2, rem%2
        else:
            gp, i, r = (rem-64)//2, 8, rem%2
        mu = 9*w+i
        b, u = divmod(mu, 8)
        out.append(64*b + 8*(2*gp+r) + u)
    assert sorted(out) == list(range(576))
    return out

WS_XNF  = 0x2600000
XNF_BYTES = S*D*2
WS_WPF  = 0x2900000
WPF_HEAD = 72*1024
WPF_BYTES = 32*WPF_HEAD
WS_WOF  = 0x2C00000
WOF_BYTES = 36*18*1024
WS_KV   = 0x2D00000
KV_HEAD = 20*36*4
KV_BYTES = 32*KV_HEAD
WS_PHIQ = 0x2E00000
PHIQ_BLK = 2304
PHIQ_BYTES = 64*32*PHIQ_BLK

def drow32(r, half):
    return (r//4)*8 + 4*half + r%4
def kslot_d(s, half, j):
    return 16*s + 8*(j//4) + 4*half + (j%4)
def wpf_row(tile, m):
    half = (m>>2)&1; r = (m>>3)*4 + (m&3)
    if r <= 8: return ('pq' if tile == 0 else 'pk', 9*half + r)
    if tile == 0: return ('v', 9*half + (r-9))
    if r <= 10: return ('v', 9*half + 7 + (r-9))
    return (None, 0)
def o_sigma_to_he():
    out = [None]*576
    for w in range(8):
        for half in range(2):
            for q in range(18):
                p, i = divmod(q, 9)
                if q < 16: dw = (9*w + 4*half + q//4)*4 + q%4
                else: dw = (9*w+8)*4 + 2*half + (q-16)
                for lo in range(2):
                    out[2*dw+lo] = (4*w + 2*p + lo)*18 + 9*half + i
    assert sorted(out) == list(range(576))
    return out


def w2_frag_index(w, i, ks):
    if i < 2: return 162 + ks*2 + i
    nt2 = 3 if w < 4 else 2
    return 162 + 36 + ks*nt2 + (i-2)
WS_FL   = 0x3400000
FL_STRIDE = 128
WS_TAG  = 0x3500000
```

```python
from asmlib import *
from common import *
from gen_ffn import magic, sdiv, srd, srd_off, f2u, pack_w1_task, pack_w2_task, perm_table

def ln_rows(e, X, TMP, ntok_lanes=8):
    s1a, s1b, s2a, s2b = TMP, TMP+1, TMP+2, TMP+3
    for r in (s1a, s1b, s2a, s2b):
        e(f"v_mov_b32 v{r}, 0")
    e(f"v_mov_b32 v{TMP+4}, 0x3f803f80")
    for i in range(36):
        e(f"v_dot2c_f32_bf16 v{s1a+(i&1)}, v{X+i}, v{TMP+4}")
        e(f"v_dot2c_f32_bf16 v{s2a+(i&1)}, v{X+i}, v{X+i}")
    e("s_nop 3")
    e(f"v_add_f32 v{s1a}, v{s1a}, v{s1b}")
    e(f"v_add_f32 v{s2a}, v{s2a}, v{s2b}")
    for dpp in ("quad_perm:[1,0,3,2]", "quad_perm:[2,3,0,1]", "row_half_mirror"):
        e("s_nop 1")
        e(f"v_add_f32_dpp v{s1a}, v{s1a}, v{s1a} {dpp} row_mask:0xf bank_mask:0xf")
        e(f"v_add_f32_dpp v{s2a}, v{s2a}, v{s2a} {dpp} row_mask:0xf bank_mask:0xf")
    inv = f2u(1.0/576)
    e(f"v_mul_f32 v{s1a}, {hex(inv)}, v{s1a}")
    e(f"v_mul_f32 v{s2a}, {hex(inv)}, v{s2a}")
    e(f"v_fma_f32 v{s2a}, -v{s1a}, v{s1a}, v{s2a}")
    e(f"v_max_f32 v{s2a}, 0, v{s2a}")
    e(f"v_add_f32 v{s2a}, {hex(f2u(1e-5))}, v{s2a}")
    e(f"v_rsq_f32 v{s2a}, v{s2a}")
    e("s_nop 0")
    e(f"v_mul_f32 v{s1a}, v{s1a}, v{s2a}")
    e(f"v_sub_f32 v{s1a}, 0, v{s1a}")
    U = TMP+8
    for i in range(9):
        for q in range(4):
            x = X+4*i+q
            e(f"v_lshlrev_b32 v{U+2*q}, 16, v{x}")
            e(f"v_and_b32 v{U+2*q+1}, 0xffff0000, v{x}")
        for q in range(4):
            e(f"v_fma_f32 v{U+2*q}, v{U+2*q}, v{s2a}, v{s1a}")
            e(f"v_fma_f32 v{U+2*q+1}, v{U+2*q+1}, v{s2a}, v{s1a}")
        for q in range(4):
            e(f"v_cvt_pk_bf16_f32 v{X+4*i+q}, v{U+2*q}, v{U+2*q+1}")

def short_table(a, label, vals):
    a(".p2align 4")
    a(f"{label}:")
    for i in range(0, len(vals), 16):
        a("    .short " + ", ".join(str(x) for x in vals[i:i+16]))

N_LN, N_FOLD, N_WO = 64, 144, 54

def gen_k0(a, name="k0_kernel", ffn_pack=True, nt=False, crit=True):
    kernel_begin(a, name)
    e = a.e
    n_total = N_LN + N_FOLD + N_WO + (648 if ffn_pack else 0)
    e(f"s_cmp_ge_u32 s2, {n_total}")
    e(f"s_cbranch_scc1 {name}_done")
    e("s_load_dwordx4 s[4:7], s[0:1], 0")
    e("s_load_dwordx4 s[8:11], s[0:1], 16")
    e("s_load_dwordx4 s[12:15], s[0:1], 40")
    e("s_load_dwordx2 s[16:17], s[0:1], 56")
    e("s_load_dwordx2 s[18:19], s[0:1], 80")
    e("v_lshrrev_b32 v1, 6, v0")
    e("v_and_b32 v2, 63, v0")
    e("v_readfirstlane_b32 s20, v1")
    e("s_lshl_b32 s21, s2, 2")
    e("s_add_u32 s20, s20, s21")
    e("s_waitcnt lgkmcnt(0)")
    if not crit:
        e(f"s_cmp_lt_u32 s2, {N_LN+N_FOLD+N_WO}")
        e(f"s_cbranch_scc1 {name}_done")
    e(f"s_cmp_ge_u32 s2, {N_LN}")
    e(f"s_cbranch_scc1 {name}_fold")
    srd(a, 24, "s4", "s5", S*D*2)
    srd_off(a, 28, 18, 19, WS_XNF, XNF_BYTES)
    X, TMP = 8, 48
    e("v_lshrrev_b32 v3, 3, v2")
    e("v_and_b32 v4, 7, v2")
    e("v_mul_u32_u24 v5, 1152, v3")
    e("v_lshl_add_u32 v5, v4, 4, v5")
    e("s_mul_i32 s22, s20, 9216")
    for i in range(9):
        e(f"buffer_load_dwordx4 v[{X+4*i}:{X+4*i+3}], v5, s[24:27], s22 offen offset:{i*128}")
    e(f"s_cmp_ge_u32 s20, {KV_BYTES//1024}")
    e(f"s_cbranch_scc1 {name}_nokv")
    srd_off(a, 32, 18, 19, WS_KV, KV_BYTES)
    for i in range(4): e(f"v_mov_b32 v{64+i}, 0")
    e("v_lshlrev_b32 v6, 4, v2")
    e("s_lshl_b32 s23, s20, 10")
    e("buffer_store_dwordx4 v[64:67], v6, s[32:35], s23 offen")
    a.label(f"{name}_nokv")
    e("v_lshrrev_b32 v6, 1, v4")
    e("v_lshlrev_b32 v6, 10, v6")
    e("v_and_b32 v7, 1, v4")
    e("v_lshl_add_u32 v6, v7, 3, v6")
    e("s_and_b32 s23, s20, 3")
    e("s_lshl_b32 s23, s23, 3")
    e("v_add_u32 v7, s23, v3")
    e("v_lshl_add_u32 v6, v7, 4, v6")
    e("s_lshr_b32 s23, s20, 2")
    e("s_mul_i32 s23, s23, 36864")
    e("s_waitcnt vmcnt(0)")
    ln_rows(e, X, TMP)
    for i in range(9):
        e(f"buffer_store_dwordx2 v[{X+4*i}:{X+4*i+1}], v6, s[28:31], s23 offen")
        e(f"buffer_store_dwordx2 v[{X+4*i+2}:{X+4*i+3}], v6, s[28:31], s23 offen offset:512")
        if i < 8: e("s_add_u32 s23, s23, 4096")
    e("s_endpgm")

    a.label(f"{name}_fold")
    e(f"s_cmp_ge_u32 s2, {N_LN+N_FOLD}")
    e(f"s_cbranch_scc1 {name}_wo")
    e(f"s_sub_u32 s20, s20, {N_LN*4}")
    sdiv(a, "s22", "s20", 18)
    e("s_mul_i32 s23, s22, 18")
    e("s_sub_u32 s23, s20, s23")
    srd(a, 24, "s6", "s7", 576*1728*2)
    srd(a, 28, "s8", "s9", 32*18*18*2)
    srd_off(a, 32, 18, 19, WS_WPF, WPF_BYTES)
    e("v_and_b32 v3, 31, v2")
    e("v_lshrrev_b32 v4, 5, v2")
    e("v_mul_u32_u24 v5, 3456, v3")
    e("v_lshl_add_u32 v6, v4, 4, v5")
    e(f"s_mul_i32 s36, s23, {32*3456}")
    e("s_mul_i32 s37, s22, 36")
    e("s_add_u32 s36, s36, s37")
    XQ, XK, ZV, YQ, YK = 8, 12, 16, 20, 24
    e(f"buffer_load_dwordx4 v[{XQ}:{XQ+3}], v6, s[24:27], s36 offen")
    e(f"buffer_load_dwordx4 v[{XK}:{XK+3}], v6, s[24:27], s36 offen offset:1152")
    e(f"buffer_load_dwordx4 v[{ZV}:{ZV+3}], v6, s[24:27], s36 offen offset:2304")
    e(f"buffer_load_dword v{YQ}, v5, s[24:27], s36 offen offset:32")
    e(f"buffer_load_dword v{YK}, v5, s[24:27], s36 offen offset:{1152+32}")
    e(f"buffer_load_dword v{YQ+1}, v5, s[24:27], s36 offen offset:{2304+32}")
    e("v_bfe_u32 v7, v3, 2, 1")
    e("v_lshrrev_b32 v28, 3, v3")
    e("v_and_b32 v29, 3, v3")
    e("v_lshl_add_u32 v28, v28, 2, v29")
    e("v_mul_u32_u24 v29, 9, v7")
    e("v_add_u32 v30, v29, v28")
    e("v_lshlrev_b32 v31, 1, v30")
    e("v_mov_b32 v32, 0x40000000")
    e("v_cmp_gt_u32 vcc, 9, v28")
    e("s_mul_i32 s37, s22, 648")
    e("s_nop 0")
    e("v_cndmask_b32 v31, v32, v31, vcc")
    e("v_mul_u32_u24 v33, 288, v4")
    e("v_add_u32 v33, v33, v31")
    BX, BY0, BY1, BZ0, BZ1 = 36, 40, 44, 48, 52
    for j in range(8):
        e(f"buffer_load_ushort v{112+j}, v33, s[28:31], s37 offen offset:{j*36}")
    e("v_cmp_eq_u32 vcc, 0, v4")
    e("s_nop 1")
    e("v_cndmask_b32 v34, v32, v31, vcc")
    e(f"buffer_load_ushort v120, v34, s[28:31], s37 offen offset:{16*36}")
    e(f"buffer_load_ushort v121, v34, s[28:31], s37 offen offset:{17*36}")
    e("v_add_u32 v56, -9, v30")
    e("v_mov_b32 v57, -100")
    e("v_cmp_lt_u32 vcc, 8, v28")
    e("s_nop 1")
    e("v_cndmask_b32 v58, v57, v56, vcc")
    e("v_add_u32 v56, 7, v56")
    e("v_add_u32 v59, -9, v28")
    e("v_cmp_gt_u32 vcc, 2, v59")
    e("s_nop 1")
    e("v_cndmask_b32 v59, v57, v56, vcc")
    e("v_lshlrev_b32 v60, 3, v4")
    e("v_mov_b32 v61, 0x3f80")
    for (ereg, BZ, BY) in ((58, BZ0, BY0), (59, BZ1, BY1)):
        e(f"v_sub_u32 v62, v{ereg}, v60")
        e("v_and_b32 v63, 1, v62")
        e("v_lshlrev_b32 v63, 4, v63")
        e("v_lshlrev_b32 v63, v63, v61")
        e("v_ashrrev_i32 v62, 1, v62")
        for q in range(4):
            e(f"v_cmp_eq_u32 vcc, {q}, v62")
            e("s_nop 1")
            e(f"v_cndmask_b32 v{BZ+q}, 0, v63, vcc")
        e(f"v_add_u32 v62, -16, v{ereg}")
        e("v_and_b32 v63, 1, v62")
        e("v_lshlrev_b32 v63, 4, v63")
        e("v_lshlrev_b32 v63, v63, v61")
        e("v_ashrrev_i32 v62, 1, v62")
        e("v_or_b32 v62, v62, v4")
        e("v_cmp_eq_u32 vcc, 0, v62")
        e("s_nop 1")
        e(f"v_cndmask_b32 v{BY+1}, 0, v63, vcc")
        e(f"v_mov_b32 v{BY+2}, 0")
        e(f"v_mov_b32 v{BY+3}, 0")
    e("s_waitcnt vmcnt(0)")
    for q in range(4):
        e(f"v_lshl_or_b32 v{BX+q}, v{113+2*q}, 16, v{112+2*q}")
    e(f"v_lshl_or_b32 v{BY0}, v121, 16, v120")
    e(f"v_mov_b32 v{BY1}, v{BY0}")
    e("v_cmp_eq_u32 vcc, 0, v4")
    e(f"v_mov_b32 v{YK+1}, v{YQ+1}")
    e("s_nop 0")
    e(f"v_cndmask_b32 v{YQ}, 0, v{YQ}, vcc")
    e(f"v_cndmask_b32 v{YQ+1}, 0, v{YQ+1}, vcc")
    e(f"v_cndmask_b32 v{YK}, 0, v{YK}, vcc")
    e(f"v_cndmask_b32 v{YK+1}, 0, v{YK+1}, vcc")
    for r in (YQ+2, YQ+3, YK+2, YK+3): e(f"v_mov_b32 v{r}, 0")
    e("s_nop 1")
    T0, T1 = 64, 80
    mf = lambda d, A, B, c: e(f"v_mfma_f32_32x32x16_bf16 v[{d}:{d+15}], v[{A}:{A+3}], v[{B}:{B+3}], {c}")
    mf(T0, XQ, BX, "0"); mf(T1, XK, BX, "0")
    mf(T0, YQ, BY0, f"v[{T0}:{T0+15}]"); mf(T1, YK, BY1, f"v[{T1}:{T1+15}]")
    mf(T0, ZV, BZ0, f"v[{T0}:{T0+15}]"); mf(T1, ZV, BZ1, f"v[{T1}:{T1+15}]")
    e("v_lshlrev_b32 v5, 4, v2")
    e(f"s_mul_i32 s36, s22, {WPF_HEAD}")
    e("s_lshl_b32 s37, s23, 12")
    e("s_add_u32 s36, s36, s37")
    e("s_nop 15")
    for tile, T in ((0, T0), (1, T1)):
        for aa in range(2):
            O = 96 + (tile*2+aa)*4
            for q in range(4):
                e(f"v_cvt_pk_bf16_f32 v{O+q}, v{T+8*aa+2*q}, v{T+8*aa+2*q+1}")
            e(f"buffer_store_dwordx4 v[{O}:{O+3}], v5, s[32:35], s36 offen offset:{(aa*2+tile)*1024}")
    e("s_endpgm")

    a.label(f"{name}_wo")
    e(f"s_cmp_ge_u32 s2, {N_LN+N_FOLD+N_WO}")
    e(f"s_cbranch_scc1 {name}_ffn")
    e(f"s_sub_u32 s20, s20, {(N_LN+N_FOLD)*4}")
    sdiv(a, "s22", "s20", 6)
    e("s_mul_i32 s23, s22, 6")
    e("s_sub_u32 s23, s20, s23")
    srd(a, 24, "s10", "s11", 576*576*2)
    srd_off(a, 28, 18, 19, WS_WOF, WOF_BYTES)
    e("s_getpc_b64 s[32:33]")
    a.label(f"{name}_pc1")
    e(f"s_add_u32 s32, s32, {name}_otab-{name}_pc1")
    e("s_addc_u32 s33, s33, 0")
    e("v_lshrrev_b32 v3, 4, v2")
    e("v_and_b32 v4, 15, v2")
    e("v_lshlrev_b32 v5, 4, v3")
    e("s_mul_i32 s34, s23, 192")
    e("v_add_u32 v5, s34, v5")
    for k3 in range(3):
        e(f"global_load_dwordx4 v[{8+4*k3}:{11+4*k3}], v5, s[32:33] offset:{k3*64}")
    e("s_lshl_b32 s34, s22, 5")
    e("v_lshlrev_b32 v4, 1, v4")
    e("v_add_u32 v4, s34, v4")
    e("s_movk_i32 s35, 1152")
    e("s_waitcnt vmcnt(0)")
    for k3 in range(3):
        for j in range(8):
            T = 8+4*k3+j//2
            A_ = 24 + k3*8 + j
            if j%2 == 0: e(f"v_and_b32 v{A_}, 0xffff, v{T}")
            else: e(f"v_lshrrev_b32 v{A_}, 16, v{T}")
            e(f"v_mad_u32_u24 v{A_}, v{A_}, s35, v4")
            e(f"buffer_load_ushort v{64+8*k3+j}, v{A_}, s[24:27], 0 offen")
    e("v_lshlrev_b32 v5, 4, v2")
    e("s_mul_i32 s34, s22, 18")
    e("s_mul_i32 s35, s23, 3")
    e("s_add_u32 s34, s34, s35")
    e("s_lshl_b32 s34, s34, 10")
    e("s_waitcnt vmcnt(0)")
    for k3 in range(3):
        for q in range(4):
            e(f"v_lshl_or_b32 v{48+4*k3+q}, v{64+8*k3+2*q+1}, 16, v{64+8*k3+2*q}")
        e(f"buffer_store_dwordx4 v[{48+4*k3}:{51+4*k3}], v5, s[28:31], s34 offen offset:{k3*1024}")
    e("s_endpgm")

    a.label(f"{name}_ffn")
    if ffn_pack:
        e(f"s_sub_u32 s20, s20, {(N_LN+N_FOLD+N_WO)*4}")
        srd_off(a, 24, 18, 19, WS_W, WS_W_BYTES)
        e("s_cmp_ge_u32 s20, 1296")
        e(f"s_cbranch_scc1 {name}_w2")
        pack_w1_task(a, 20, 2, 12, 14, 24, 40, 4, nt=nt)
        e("s_endpgm")
        a.label(f"{name}_w2")
        e("s_sub_u32 s20, s20, 1296")
        srd(a, 28, "s16", "s17", 4608*576*2)
        e("s_getpc_b64 s[32:33]")
        a.label(f"{name}_pc2")
        e(f"s_add_u32 s32, s32, {name}_ftab-{name}_pc2")
        e("s_addc_u32 s33, s33, 0")
        pack_w2_task(a, 20, 2, 28, 24, 32, 40, 4, nt=nt)
    a.label(f"{name}_done")
    e("s_endpgm")
    short_table(a, f"{name}_otab", o_sigma_to_he())
    if ffn_pack: perm_table(a, f"{name}_ftab")
    return kernel_desc(name, 128, 64, 128), n_total


LOG2E = 1.4426950408889634
K1_PK, K1_V, K1_KVS, K1_LDS = 73728, 92160, 102400, 102400+512

def swap_reduce(e, a_, b_, op):
    e(f"v_mov_b32 v{b_}, v{a_}")
    e("s_nop 1")
    e(f"v_permlane32_swap_b32 v{a_}, v{b_}")
    e("s_nop 1")
    e(f"{op} v{a_}, v{a_}, v{b_}")

def softmax9(e, P, O, T, sL):
    mx, mn, t0, t1 = T, T+1, T+2, T+3
    Ep, Em = T+4, T+13
    e(f"v_max3_f32 v{mx}, v{P}, v{P+1}, v{P+2}")
    e(f"v_min3_f32 v{mn}, v{P}, v{P+1}, v{P+2}")
    for i in (3, 5, 7):
        e(f"v_max3_f32 v{mx}, v{mx}, v{P+i}, v{P+i+1}")
        e(f"v_min3_f32 v{mn}, v{mn}, v{P+i}, v{P+i+1}")
    e(f"v_mov_b32 v{t0}, v{mx}")
    e(f"v_mov_b32 v{t1}, v{mn}")
    e("s_nop 0")
    e(f"v_permlane32_swap_b32 v{mx}, v{t0}")
    e(f"v_permlane32_swap_b32 v{mn}, v{t1}")
    e("s_nop 0")
    e(f"v_max_f32 v{mx}, v{mx}, v{t0}")
    e(f"v_min_f32 v{mn}, v{mn}, v{t1}")
    e(f"v_mul_f32 v{mx}, s{sL}, v{mx}")
    e(f"v_mul_f32 v{mn}, s{sL}, v{mn}")
    for i in range(9):
        e(f"v_fma_f32 v{Ep+i}, v{P+i}, s{sL}, -v{mx}")
        e(f"v_fma_f32 v{Em+i}, -v{P+i}, s{sL}, v{mn}")
    for i in range(9):
        e(f"v_exp_f32 v{Ep+i}, v{Ep+i}")
        e(f"v_exp_f32 v{Em+i}, v{Em+i}")
    e("s_nop 0")
    e(f"v_add_f32 v{mx}, v{Ep}, v{Ep+1}")
    e(f"v_add_f32 v{mn}, v{Em}, v{Em+1}")
    for i in range(2, 9):
        e(f"v_add_f32 v{mx}, v{mx}, v{Ep+i}")
        e(f"v_add_f32 v{mn}, v{mn}, v{Em+i}")
    e(f"v_mov_b32 v{t0}, v{mx}")
    e(f"v_mov_b32 v{t1}, v{mn}")
    e("s_nop 0")
    e(f"v_permlane32_swap_b32 v{mx}, v{t0}")
    e(f"v_permlane32_swap_b32 v{mn}, v{t1}")
    e("s_nop 0")
    e(f"v_add_f32 v{mx}, v{mx}, v{t0}")
    e(f"v_add_f32 v{mn}, v{mn}, v{t1}")
    e(f"v_rcp_f32 v{mx}, v{mx}")
    e(f"v_rcp_f32 v{mn}, v{mn}")
    e("s_nop 0")
    for i in range(9):
        e(f"v_mul_f32 v{Ep+i}, v{Ep+i}, v{mx}")
        e(f"v_mul_f32 v{Em+i}, v{Em+i}, v{mn}")
    vals = [Ep+i for i in range(9)] + [Em+i for i in range(9)]
    for q in range(9):
        e(f"v_cvt_pk_bf16_f32 v{O+q}, v{vals[2*q]}, v{vals[2*q+1]}")

def gen_k1(a, name="k1_kernel", ts=False):
    kernel_begin(a, name)
    e = a.e
    B, D0, D1, A0, T = 16, 160, 176, 192, 208
    e("s_cmp_ge_u32 s2, 256")
    e(f"s_cbranch_scc1 {name}_done")
    if ts: e("s_memtime s[40:41]")
    e("s_load_dwordx2 s[4:5], s[0:1], 80")
    e("v_lshrrev_b32 v1, 6, v0")
    e("v_and_b32 v2, 63, v0")
    e("v_readfirstlane_b32 s20, v1")
    e("s_and_b32 s23, s2, 7")
    e("s_lshr_b32 s24, s2, 3")
    e("s_and_b32 s21, s23, 3")
    e("s_lshl_b32 s21, s21, 1")
    e("s_and_b32 s25, s24, 1")
    e("s_add_u32 s21, s21, s25")
    e("s_lshr_b32 s22, s23, 2")
    e("s_lshl_b32 s22, s22, 4")
    e("s_lshr_b32 s25, s24, 1")
    e("s_add_u32 s22, s22, s25")
    e("v_lshlrev_b32 v3, 4, v2")
    e("s_waitcnt lgkmcnt(0)")
    e(f"s_mul_i32 s23, s22, {WPF_HEAD}")
    e(f"s_add_u32 s23, s23, {WS_WPF}")
    srd_off(a, 8, 4, 5, "s23", WPF_HEAD)
    srd_off(a, 12, 4, 5, WS_XNF, XNF_BYTES)
    e("s_mul_i32 s24, s20, 9216")
    for i in range(9):
        if i % 4 == 0:
            e(f"s_add_u32 s25, s24, {i*1024}")
            e("s_mov_b32 m0, s25")
            e("s_nop 0")
        e(f"buffer_load_dwordx4 v3, s[8:11], s25 offen offset:{(i%4)*1024} lds")
    e("s_barrier")
    RB = 12
    e("s_lshl_b32 s26, s21, 3")
    e("s_add_u32 s26, s26, s20")
    e("s_mul_i32 s27, s26, 36864")
    st = {"blk": 0}
    def bload(s):
        while st["blk"] < s//4:
            e("s_add_u32 s27, s27, 4096"); st["blk"] += 1
        r = B + 4*(s % RB)
        e(f"buffer_load_dwordx4 v[{r}:{r+3}], v3, s[12:15], s27 offen offset:{(s%4)*1024}")
    for s in range(RB): bload(s)
    srd_off(a, 16, 4, 5, WS_PHIQ, PHIQ_BYTES)
    e(f"s_mul_i32 s23, s22, {KV_HEAD}")
    e(f"s_add_u32 s23, s23, {WS_KV}")
    srd_off(a, 28, 4, 5, "s23", KV_HEAD)
    e(f"s_mov_b32 s33, {hex(f2u(LOG2E))}")
    e("v_add_u32 v14, 0x10000, v3")
    if ts: e("s_memtime s[50:51]")
    e(f"s_waitcnt vmcnt({RB})")
    if ts: e("s_memtime s[52:53]")
    e("s_barrier")
    if ts: e("s_memtime s[42:43]")
    def aread(s):
        r = A0 + (s%2)*8
        va, off = (3, s*2048) if s < 32 else (14, s*2048-65536)
        e(f"ds_read_b128 v[{r}:{r+3}], v{va} offset:{off}")
        e(f"ds_read_b128 v[{r+4}:{r+7}], v{va} offset:{off+1024}")
    aread(0)
    for s in range(36):
        vm = min(RB-1, 35-s)
        if s < 35:
            aread(s+1)
            e(f"s_waitcnt vmcnt({vm}) lgkmcnt(2)")
        else:
            e("s_waitcnt vmcnt(0) lgkmcnt(0)")
        if ts and s == 0: e("s_memtime s[54:55]")
        r = A0 + (s%2)*8
        rb = B + 4*(s % RB)
        c0 = "0" if s == 0 else f"v[{D0}:{D0+15}]"
        c1 = "0" if s == 0 else f"v[{D1}:{D1+15}]"
        e(f"v_mfma_f32_32x32x16_bf16 v[{D0}:{D0+15}], v[{r}:{r+3}], v[{rb}:{rb+3}], {c0}")
        e(f"v_mfma_f32_32x32x16_bf16 v[{D1}:{D1+15}], v[{r+4}:{r+7}], v[{rb}:{rb+3}], {c1}")
        if s + RB < 36: bload(s + RB)
    if ts: e("s_memtime s[44:45]")
    e("s_nop 15")
    OQ, OK_ = 16, 28
    softmax9(e, D0, OQ, T, 33)
    e("s_lshl_b32 s24, s26, 5")
    e("s_add_u32 s24, s24, s22")
    e(f"s_mul_i32 s24, s24, {PHIQ_BLK}")
    e("v_lshlrev_b32 v4, 2, v2")
    e(f"buffer_store_dwordx4 v[{OQ}:{OQ+3}], v3, s[16:19], s24 offen")
    e(f"buffer_store_dwordx4 v[{OQ+4}:{OQ+7}], v3, s[16:19], s24 offen offset:1024")
    e(f"buffer_store_dword v{OQ+8}, v4, s[16:19], s24 offen offset:2048")
    softmax9(e, D1, OK_, T, 33)
    e("v_and_b32 v5, 31, v2")
    e("v_lshrrev_b32 v6, 5, v2")
    e("s_lshl_b32 s24, s20, 5")
    e("v_add_u32 v7, s24, v5")
    e("v_mul_u32_u24 v8, 72, v7")
    e("v_mad_u32_u24 v8, v6, 36, v8")
    e(f"v_add_u32 v8, {K1_PK}, v8")
    for q in range(4):
        e(f"ds_write2_b32 v8, v{OK_+2*q}, v{OK_+2*q+1} offset0:{2*q} offset1:{2*q+1}")
    e(f"ds_write_b32 v8, v{OK_+8} offset:32")
    OV = 40
    vv = [D0+9+i for i in range(7)] + [D1+9, D1+10]
    e("v_cmp_eq_u32 vcc, 0, v6")
    e("v_mov_b32 v9, 1.0")
    e("s_nop 0")
    e("v_cndmask_b32 v9, 0, v9, vcc")
    for q in range(4):
        e(f"v_cvt_pk_bf16_f32 v{OV+q}, v{vv[2*q]}, v{vv[2*q+1]}")
    e(f"v_cvt_pk_bf16_f32 v{OV+4}, v{vv[8]}, v9")
    e("v_mul_u32_u24 v8, 40, v7")
    e("v_mad_u32_u24 v8, v6, 20, v8")
    e(f"v_add_u32 v8, {K1_V}, v8")
    for q in range(2):
        e(f"ds_write2_b32 v8, v{OV+2*q}, v{OV+2*q+1} offset0:{2*q} offset1:{2*q+1}")
    e(f"ds_write_b32 v8, v{OV+4} offset:16")
    e("s_waitcnt lgkmcnt(0)")
    if ts: e("s_memtime s[58:59]")
    e("s_barrier")
    if ts: e("s_memtime s[60:61]")
    e("s_cmp_ge_u32 s20, 2")
    e(f"s_cbranch_scc1 {name}_kvend")
    e("v_bfe_u32 v10, v2, 2, 2")
    e("v_lshrrev_b32 v11, 5, v2")
    e("v_lshl_add_u32 v10, v11, 3, v10")
    e("v_bfe_u32 v11, v2, 4, 1")
    e("v_and_b32 v12, 3, v2")
    e("v_lshl_add_u32 v11, v11, 2, v12")
    e("v_lshlrev_b32 v11, 3, v11")
    e("v_mad_u32_u24 v12, v10, 40, v11")
    e(f"v_add_u32 v12, {K1_V}, v12")
    e("v_mul_u32_u24 v13, 72, v10")
    e("v_add_u32 v13, v13, v11")
    e("s_lshl_b32 s24, s20, 6")
    e(f"s_add_u32 s24, s24, {K1_PK}")
    e("v_add_u32 v13, s24, v13")
    AV, BP = 48, 112
    KD = 176
    for st in range(16):
        for wh in range(2):
            e(f"ds_read_b64_tr_b16 v[{AV+4*st+2*wh}:{AV+4*st+2*wh+1}], v12 offset:{(16*st+4*wh)*40}")
            e(f"ds_read_b64_tr_b16 v[{BP+4*st+2*wh}:{BP+4*st+2*wh+1}], v13 offset:{(16*st+4*wh)*72}")
        if st >= 3:
            sp = st - 3
            e("s_waitcnt lgkmcnt(12)")
            c = "0" if sp == 0 else f"v[{KD}:{KD+15}]"
            e(f"v_mfma_f32_32x32x16_bf16 v[{KD}:{KD+15}], v[{AV+4*sp}:{AV+4*sp+3}], v[{BP+4*sp}:{BP+4*sp+3}], {c}")
    for sp in range(13, 16):
        e(f"s_waitcnt lgkmcnt({(15-sp)*4})")
        e(f"v_mfma_f32_32x32x16_bf16 v[{KD}:{KD+15}], v[{AV+4*sp}:{AV+4*sp+3}], v[{BP+4*sp}:{BP+4*sp+3}], v[{KD}:{KD+15}]")
    e("v_and_b32 v5, 31, v2")
    e("v_lshrrev_b32 v6, 5, v2")
    e("v_mul_u32_u24 v6, 576, v6")
    e("v_lshl_add_u32 v6, v5, 2, v6")
    e("s_lshl_b32 s24, s20, 7")
    e("v_add_u32 v6, s24, v6")
    e("v_mov_b32 v7, 0x40000000")
    e("s_cmp_eq_u32 s20, 0")
    e("s_cselect_b32 s25, 32, 4")
    e("v_cmp_gt_u32 vcc, s25, v5")
    e("s_nop 1")
    e("v_cndmask_b32 v6, v7, v6, vcc")
    e("v_cmp_gt_u32 vcc, 32, v2")
    e("s_nop 1")
    e("v_cndmask_b32 v8, v7, v6, vcc")
    e("s_nop 7")
    for r in range(12):
        off = ((r//4)*8 + r%4)*144
        e(f"buffer_atomic_add_f32 v{KD+r}, v{6 if r < 8 else 8}, s[28:31], 0 offen offset:{off}")
    a.label(f"{name}_kvend")
    if ts:
        e("s_waitcnt vmcnt(0)")
        e("s_memtime s[46:47]")
        srd_off(a, 36, 4, 5, WS_TS + 0x40000, 0x40000)
        e("s_waitcnt lgkmcnt(0)")
        e("s_lshl_b32 s24, s2, 3"); e("s_add_u32 s24, s24, s20"); e("s_lshl_b32 s24, s24, 6")
        for i in range(12): e(f"v_mov_b32 v{16+i}, s{40+2*i}")
        e("v_mov_b32 v10, 0")
        e("v_cmp_eq_u32 vcc, 0, v2")
        e("s_and_saveexec_b64 s[62:63], vcc")
        e("buffer_store_dwordx4 v[16:19], v10, s[36:39], s24 offen")
        e("buffer_store_dwordx4 v[20:23], v10, s[36:39], s24 offen offset:16")
        e("buffer_store_dwordx4 v[24:27], v10, s[36:39], s24 offen offset:32")
    a.label(f"{name}_done")
    e("s_endpgm")
    return kernel_desc(name, 256, 80, 256)

K2_O, K2_LDS = 98304, 98304 + 36864

def gen_k2(a, name="k2_kernel", ts=False):
    kernel_begin(a, name)
    e = a.e
    PQ = 16
    WO = 52
    WO2 = 124
    T = 196
    e("s_cmp_ge_u32 s2, 256")
    e(f"s_cbranch_scc1 {name}_done")
    if ts: e("s_memtime s[40:41]")
    e("s_load_dwordx2 s[4:5], s[0:1], 80")
    e("s_load_dwordx2 s[6:7], s[0:1], 0")
    e("v_lshrrev_b32 v1, 6, v0")
    e("v_and_b32 v2, 63, v0")
    e("v_readfirstlane_b32 s20, v1")
    e("s_and_b32 s23, s2, 7")
    e("s_lshr_b32 s21, s2, 3")
    e("s_lshr_b32 s22, s21, 2")
    e("s_lshl_b32 s23, s23, 3")
    e("s_add_u32 s22, s22, s23")
    e("s_and_b32 s21, s21, 3")
    e("v_lshlrev_b32 v3, 4, v2")
    e("v_lshlrev_b32 v4, 2, v2")
    e("s_waitcnt lgkmcnt(0)")
    srd_off(a, 8, 4, 5, WS_KV, KV_BYTES)
    srd_off(a, 12, 4, 5, WS_PHIQ, PHIQ_BYTES)
    srd_off(a, 16, 4, 5, WS_WOF, WOF_BYTES)
    e(f"s_mul_i32 s24, s20, {4*KV_HEAD}")
    e("s_mul_i32 s26, s20, 12288")
    e("s_sub_u32 s27, s26, s24")
    for k in range(12):
        if k % 4 == 0:
            e(f"s_add_u32 s25, s24, {k*1024}")
            e("s_add_u32 s28, s25, s27")
            e("s_mov_b32 m0, s28")
            e("s_nop 0")
        e(f"buffer_load_dwordx4 v3, s[8:11], s25 offen offset:{(k%4)*1024} lds")
    PQ = 16
    WO = 64; WO2 = 136; T = 208
    e("s_lshl_b32 s24, s22, 5")
    e("s_lshl_b32 s25, s20, 2")
    e("s_add_u32 s24, s24, s25")
    e(f"s_mul_i32 s24, s24, {PHIQ_BLK}")
    for i in range(4):
        r = PQ + 12*i
        e(f"buffer_load_dwordx4 v[{r}:{r+3}], v3, s[12:15], s24 offen")
        e(f"buffer_load_dwordx4 v[{r+4}:{r+7}], v3, s[12:15], s24 offen offset:1024")
        e(f"buffer_load_dword v{r+8}, v4, s[12:15], s24 offen offset:2048")
        for z in (9, 10, 11): e(f"v_mov_b32 v{r+z}, 0")
        if i < 3: e(f"s_add_u32 s24, s24, {PHIQ_BLK}")
    e("s_mul_i32 s29, s21, 9")
    e("s_add_u32 s30, s29, s20")
    e("s_mul_i32 s30, s30, 18432")
    e("s_add_u32 s31, s29, 8")
    e("s_mul_i32 s31, s31, 18432")
    def woload(ks, which):
        base = WO if which == 0 else WO2
        sreg = 30 if which == 0 else 31
        if ks and ks % 4 == 0: e(f"s_add_u32 s{sreg}, s{sreg}, 4096")
        e(f"buffer_load_dwordx4 v[{base+4*ks}:{base+4*ks+3}], v3, s[16:19], s{sreg} offen offset:{(ks%4)*1024}")
    if ts: e("s_memtime s[42:43]")
    e("v_and_b32 v5, 31, v2")
    e("v_lshrrev_b32 v6, 5, v2")
    e("v_bfe_u32 v7, v5, 2, 1")
    e("v_lshrrev_b32 v8, 3, v5")
    e("v_and_b32 v9, 3, v5")
    e("v_lshl_add_u32 v8, v8, 2, v9")
    e("v_mad_u32_u24 v9, v7, 10, v8")
    e("v_mov_b32 v10, 9")
    e("v_cmp_eq_u32 vcc, 9, v8")
    e("s_nop 1")
    e("v_cndmask_b32 v9, v9, v10, vcc")
    e("v_mov_b32 v10, 19")
    e("v_cmp_lt_u32 vcc, 9, v8")
    e("s_nop 1")
    e("v_cndmask_b32 v9, v9, v10, vcc")
    e("v_mul_u32_u24 v9, 144, v9")
    e("v_mad_u32_u24 v9, v6, 64, v9")
    e("v_lshl_add_u32 v9, v6, 3, v9")
    e("v_add_u32 v9, s26, v9")
    e("s_waitcnt vmcnt(12)")
    F = T
    AF = T + 18
    AF = (AF + 1)//2*2
    DD = AF + 12
    assert DD + 16 <= 256, DD
    OO = 8
    for z in (9, 10, 11): e(f"v_mov_b32 v{AF+z}, 0")
    for i in range(4):
        for q in range(9):
            e(f"ds_read_b64 v[{F+2*q}:{F+2*q+1}], v9 offset:{i*KV_HEAD + q*8}")
        e("s_waitcnt lgkmcnt(0)")
        for q in range(9):
            e(f"v_cvt_pk_bf16_f32 v{AF+q}, v{F+2*q}, v{F+2*q+1}")
        nwo = min(18, 5*i)
        e(f"s_waitcnt vmcnt({(3-i)*3 + nwo})")
        e("s_nop 1")
        r = PQ + 12*i
        e(f"v_mfma_f32_32x32x16_bf16 v[{DD}:{DD+15}], v[{AF}:{AF+3}], v[{r}:{r+3}], 0")
        e(f"v_mfma_f32_32x32x16_bf16 v[{DD}:{DD+15}], v[{AF+4}:{AF+7}], v[{r+4}:{r+7}], v[{DD}:{DD+15}]")
        e(f"v_mfma_f32_32x32x16_bf16 v[{DD}:{DD+15}], v[{AF+8}:{AF+11}], v[{r+8}:{r+11}], v[{DD}:{DD+15}]")
        for ks in range(5*i, min(18, 5*i+5)): woload(ks, 0)
        e("s_nop 12")
        e(f"v_add_f32 v{F}, {hex(f2u(1e-6))}, v{DD+9}")
        e(f"v_rcp_f32 v{F}, v{F}")
        e("s_nop 0")
        for q in range(9):
            e(f"v_mul_f32 v{r+q}, v{DD+q}, v{F}")
    e("s_cmp_ge_u32 s20, 1")
    e(f"s_cbranch_scc1 {name}_nowo2")
    for ks in range(18): woload(ks, 1)
    a.label(f"{name}_nowo2")
    for p in range(2):
        for i in range(9):
            e(f"v_cvt_pk_bf16_f32 v{T+9*p+i}, v{PQ+12*(2*p)+i}, v{PQ+12*(2*p+1)+i}")
    e("v_bfe_u32 v7, v5, 1, 3")
    e("v_mul_u32_u24 v8, 1152, v5")
    e(f"v_add_u32 v8, {K2_O}, v8")
    e("s_mul_i32 s24, s20, 9")
    e("v_lshlrev_b32 v9, 2, v6")
    e("v_add_u32 v9, s24, v9")
    for q4 in range(4):
        e(f"v_add_u32 v10, {q4}, v9")
        e("v_xor_b32 v10, v10, v7")
        e("v_lshl_add_u32 v10, v10, 4, v8")
        e(f"ds_write_b128 v10, v[{T+4*q4}:{T+4*q4+3}]")
    e("s_add_u32 s24, s24, 8")
    e("v_xor_b32 v10, s24, v7")
    e("v_lshl_add_u32 v10, v10, 4, v8")
    e("v_lshl_add_u32 v10, v6, 3, v10")
    e(f"ds_write_b64 v10, v[{T+16}:{T+17}]")
    e("s_waitcnt lgkmcnt(0)")
    e("s_barrier")
    if ts: e("s_memtime s[44:45]")
    e("v_and_b32 v5, 15, v2")
    e("v_lshrrev_b32 v6, 4, v2")
    e("v_lshrrev_b32 v7, 1, v5")
    e("v_mul_u32_u24 v8, 1152, v5")
    e(f"v_add_u32 v8, {K2_O}, v8")
    e("v_xor_b32 v9, v6, v7")
    e("v_lshl_add_u32 v10, v9, 4, v8")
    e("v_xor_b32 v9, 4, v9")
    e("v_lshl_add_u32 v11, v9, 4, v8")
    BB = T
    AC = T + 16
    def bread(ks):
        for tt in range(2):
            r = BB + (ks%2)*8 + tt*4
            e(f"ds_read_b128 v[{r}:{r+3}], v{10 if ks%2==0 else 11} offset:{tt*18432 + (ks//2)*128}")
    for cls in (0, 1):
        if cls == 0:
            e("s_cmp_ge_u32 s20, 1")
            e(f"s_cbranch_scc1 {name}_g1")
        else:
            a.label(f"{name}_g1")
        e("s_waitcnt vmcnt(0)")
        bread(0)
        for ks in range(18):
            if ks < 17:
                bread(ks+1); e("s_waitcnt lgkmcnt(2)")
            else:
                e("s_waitcnt lgkmcnt(0)")
            for tt in range(2):
                c = "0" if ks == 0 else f"v[{AC+4*tt}:{AC+4*tt+3}]"
                r = BB + (ks%2)*8 + tt*4
                e(f"v_mfma_f32_16x16x32_bf16 v[{AC+4*tt}:{AC+4*tt+3}], v[{WO+4*ks}:{WO+4*ks+3}], v[{r}:{r+3}], {c}")
            if cls == 0:
                for tt in range(2):
                    c = "0" if ks == 0 else f"v[{AC+8+4*tt}:{AC+8+4*tt+3}]"
                    r = BB + (ks%2)*8 + tt*4
                    e(f"v_mfma_f32_16x16x32_bf16 v[{AC+8+4*tt}:{AC+8+4*tt+3}], v[{WO2+4*ks}:{WO2+4*ks+3}], v[{r}:{r+3}], {c}")
        if cls == 0:
            e(f"s_branch {name}_g2")
    a.label(f"{name}_g2")
    if ts: e("s_memtime s[46:47]")
    e("v_mul_u32_u24 v8, 592, v5")
    e("v_lshl_add_u32 v8, v6, 4, v8")
    e("s_lshl_b32 s24, s20, 6")
    e("v_add_u32 v8, s24, v8")
    e("s_nop 7")
    e(f"ds_write_b128 v8, v[{AC}:{AC+3}]")
    e(f"ds_write_b128 v8, v[{AC+4}:{AC+7}] offset:{16*592}")
    e("s_cmp_ge_u32 s20, 1")
    e(f"s_cbranch_scc1 {name}_e1")
    e("v_mul_u32_u24 v8, 592, v5")
    e("v_lshl_add_u32 v8, v6, 4, v8")
    e(f"ds_write_b128 v8, v[{AC+8}:{AC+11}] offset:512")
    e(f"ds_write_b128 v8, v[{AC+12}:{AC+15}] offset:{16*592+512}")
    a.label(f"{name}_e1")
    e("s_waitcnt lgkmcnt(0)")
    e("s_barrier")
    srd(a, 8, "s6", "s7", S*D*2)
    srd_off(a, 12, 4, 5, WS_H, WS_H_BYTES)
    e("s_mul_i32 s24, s22, 36864")
    e("s_mul_i32 s25, s21, 288")
    e("s_add_u32 s24, s24, s25")
    for rnd in range(2):
        if rnd == 1:
            e("s_cmp_ge_u32 s20, 1")
            e(f"s_cbranch_scc1 {name}_fin")
            e("v_add_u32 v12, 512, v0")
        else:
            e("v_mov_b32 v12, v0")
        e("v_mul_u32_u24 v13, 3641, v12")
        e("v_lshrrev_b32 v13, 16, v13")
        e("v_mul_u32_u24 v14, 18, v13")
        e("v_sub_u32 v14, v12, v14")
        e("v_mul_u32_u24 v15, 1152, v13")
        e("v_lshl_add_u32 v15, v14, 4, v15")
        e(f"buffer_load_dwordx4 v[16:19], v15, s[8:11], s24 offen")
        e("v_mul_u32_u24 v13, 592, v13")
        e("v_lshl_add_u32 v13, v14, 5, v13")
        e("ds_read_b128 v[20:23], v13")
        e("ds_read_b128 v[24:27], v13 offset:16")
        e("s_waitcnt vmcnt(0) lgkmcnt(0)")
        for q in range(4):
            e(f"v_lshlrev_b32 v{28+2*q}, 16, v{16+q}")
            e(f"v_and_b32 v{29+2*q}, 0xffff0000, v{16+q}")
        for q in range(8):
            e(f"v_add_f32 v{20+q}, v{20+q}, v{28+q}")
        for q in range(4):
            e(f"v_cvt_pk_bf16_f32 v{16+q}, v{20+2*q}, v{21+2*q}")
        e(f"buffer_store_dwordx4 v[16:19], v15, s[12:15], s24 offen")
        if rnd == 0: e("s_nop 1")
    a.label(f"{name}_fin")
    if ts:
        e("s_waitcnt vmcnt(0)")
        e("s_memtime s[48:49]")
        srd_off(a, 36, 4, 5, WS_TS + 0x80000, 0x40000)
        e("s_waitcnt lgkmcnt(0)")
        e("s_lshl_b32 s24, s2, 3"); e("s_add_u32 s24, s24, s20"); e("s_lshl_b32 s24, s24, 5")
        for i in range(5): e(f"v_mov_b32 v{16+i}, s{40+2*i}")
        e("v_mov_b32 v10, 0")
        e("v_cmp_eq_u32 vcc, 0, v2")
        e("s_and_saveexec_b64 s[50:51], vcc")
        e("buffer_store_dwordx4 v[16:19], v10, s[36:39], s24 offen")
        e("buffer_store_dword v20, v10, s[36:39], s24 offen offset:16")
    a.label(f"{name}_done")
    e("s_endpgm")
    return kernel_desc(name, 256, 64, 256)
```

```python
from asmlib import *
from common import *

def magic(c):
    return (2**32 + c - 1)//c

def sdiv(a, dst, src, c, tmp=None):
    a.e(f"s_mul_hi_u32 {dst}, {src}, {hex(magic(c))}")

def srd(a, d, lo, hi, nbytes):
    a.e(f"s_mov_b32 s{d}, {lo}")
    a.e(f"s_mov_b32 s{d+1}, {hi}")
    a.e(f"s_mov_b32 s{d+2}, {hex(nbytes)}")
    a.e(f"s_mov_b32 s{d+3}, 0x20000")

def srd_off(a, d, plo, phi, off, nbytes):
    o = hex(off) if isinstance(off, int) else off
    a.e(f"s_add_u32 s{d}, s{plo}, {o}")
    a.e(f"s_addc_u32 s{d+1}, s{phi}, 0")
    a.e(f"s_mov_b32 s{d+2}, {hex(nbytes)}")
    a.e(f"s_mov_b32 s{d+3}, 0x20000")

def pack_w1_task(a, sT, vlane, sWg, sWu, sSRDW, st, vt, nt=False):
    e = a.e
    sj, sb, sks, s0, s1, s2, s3 = [st+i for i in range(7)]
    sstr = st+8
    ssel = st+10
    sdiv(a, f"s{sj}", f"s{sT}", 162)
    e(f"s_mul_i32 s{s0}, s{sj}, 162")
    e(f"s_sub_u32 s{s0}, s{sT}, s{s0}")
    sdiv(a, f"s{sb}", f"s{s0}", 18)
    e(f"s_mul_i32 s{s1}, s{sb}, 18")
    e(f"s_sub_u32 s{sks}, s{s0}, s{s1}")
    e(f"s_mul_i32 s{s0}, s{sks}, 294912")
    e(f"s_mul_i32 s{s1}, s{sj}, 1152")
    e(f"s_add_u32 s{s0}, s{s0}, s{s1}")
    e(f"s_lshl_b32 s{s1}, s{sb}, 7")
    e(f"s_add_u32 s{s0}, s{s0}, s{s1}")
    L = vt
    O = vt+32
    va = vt+64
    t0, t1, t2, t3 = vt+66, vt+67, vt+68, vt+69
    e(f"v_lshrrev_b32 v{t0}, 4, v{vlane}")
    e(f"v_mul_u32_u24 v{t0}, 0x12000, v{t0}")
    e(f"v_bfe_u32 v{t1}, v{vlane}, 2, 2")
    e(f"v_lshlrev_b32 v{t1}, 5, v{t1}")
    e(f"v_and_b32 v{t2}, 1, v{vlane}")
    e(f"v_lshlrev_b32 v{t2}, 4, v{t2}")
    e(f"v_add3_u32 v{t0}, v{t0}, v{t1}, v{t2}")
    e(f"v_add_u32 v{t0}, s{s0}, v{t0}")
    e(f"v_and_b32 v{t1}, 2, v{vlane}")
    e(f"v_cmp_eq_u32 vcc, 0, v{t1}")
    e(f"v_mov_b32 v{t2}, s{sWu}")
    e(f"v_mov_b32 v{t3}, s{sWg}")
    e(f"v_cndmask_b32 v{va}, v{t2}, v{t3}, vcc")
    e(f"v_mov_b32 v{t2}, s{sWu+1}")
    e(f"v_mov_b32 v{t3}, s{sWg+1}")
    e(f"v_cndmask_b32 v{va+1}, v{t2}, v{t3}, vcc")
    e(f"v_add_co_u32 v{va}, vcc, v{va}, v{t0}")
    e(f"s_mov_b32 s{sstr}, 9216")
    e(f"s_mov_b32 s{sstr+1}, 0")
    e(f"v_addc_co_u32 v{va+1}, vcc, 0, v{va+1}, vcc")
    for jj in range(8):
        e(f"global_load_dwordx4 v[{L+4*jj}:{L+4*jj+3}], v[{va}:{va+1}], off" + (" nt" if nt else ""))
        if jj < 7:
            e(f"v_lshl_add_u64 v[{va}:{va+1}], v[{va}:{va+1}], 0, s[{sstr}:{sstr+1}]")
    e(f"s_mov_b32 s{ssel}, 0x05040100")
    e(f"s_mov_b32 s{ssel+1}, 0x07060302")
    e(f"v_lshlrev_b32 v{t0}, 4, v{vlane}")
    e(f"s_mul_i32 s{s3}, s{sj}, {SPLIT_BYTES}")
    e("s_waitcnt vmcnt(0)")
    for u in range(8):
        for q in range(4):
            e(f"v_perm_b32 v{O+4*u+q}, v{L+4*(2*q+1)+u//2}, v{L+4*(2*q)+u//2}, s{ssel+(u&1)}")
    for u in range(8):
        e(f"s_lshl_b32 s{s0}, s{sb}, 3")
        e(f"s_add_u32 s{s0}, s{s0}, {u}")
        e(f"s_mul_i32 s{s1}, s{s0}, 57")
        e(f"s_lshr_b32 s{s1}, s{s1}, 9")
        e(f"s_mul_i32 s{s2}, s{s1}, 9")
        e(f"s_sub_u32 s{s0}, s{s0}, s{s2}")
        e(f"s_mul_i32 s{s2}, s{s1}, 234")
        e(f"s_add_u32 s{s2}, s{s2}, 72")
        e(f"s_cmp_lt_u32 s{s1}, 4")
        e(f"s_mul_i32 s{s1}, s{s1}, 252")
        e(f"s_cselect_b32 s{s2}, s{s1}, s{s2}")
        e(f"s_mul_i32 s{s1}, s{sks}, 5")
        e(f"s_add_u32 s{s1}, s{s1}, 68")
        e(f"s_lshl_b32 s{st+7}, s{sks}, 2")
        e(f"s_cmp_lt_u32 s{s0}, 4")
        e(f"s_cselect_b32 s{s1}, s{st+7}, s{s1}")
        e(f"s_add_u32 s{s1}, s{s1}, s{s0}")
        e(f"s_add_u32 s{s1}, s{s1}, s{s2}")
        e(f"s_lshl_b32 s{s1}, s{s1}, 10")
        e(f"s_add_u32 s{s1}, s{s1}, s{s3}")
        e(f"buffer_store_dwordx4 v[{O+4*u}:{O+4*u+3}], v{t0}, s[{sSRDW}:{sSRDW+3}], s{s1} offen")

def pack_w2_task(a, sT, vlane, sSRDd, sSRDW, sTab, st, vt, nt=False):
    e = a.e
    sj, sb, sks, s0, s1, s2, s3 = [st+i for i in range(7)]
    ssel = st+10
    sdiv(a, f"s{sj}", f"s{sT}", 162)
    e(f"s_mul_i32 s{s0}, s{sj}, 162")
    e(f"s_sub_u32 s{s0}, s{sT}, s{s0}")
    sdiv(a, f"s{sks}", f"s{s0}", 9)
    e(f"s_mul_i32 s{s1}, s{sks}, 9")
    e(f"s_sub_u32 s{sb}, s{s0}, s{s1}")
    L = vt
    O = vt+16
    T = vt+32
    A = vt+36
    t0, t1 = vt+44, vt+45
    e(f"v_lshrrev_b32 v{t0}, 4, v{vlane}")
    e(f"v_lshlrev_b32 v{t0}, 4, v{t0}")
    e(f"s_lshl_b32 s{s0}, s{sks}, 6")
    e(f"v_add_u32 v{t0}, s{s0}, v{t0}")
    e(f"global_load_dwordx4 v[{T}:{T+3}], v{t0}, s[{sTab}:{sTab+1}]")
    e(f"s_mul_i32 s{s0}, s{sj}, {576*1152}")
    e(f"s_lshl_b32 s{s1}, s{sb}, 7")
    e(f"s_add_u32 s{s0}, s{s0}, s{s1}")
    e(f"v_and_b32 v{t1}, 15, v{vlane}")
    e(f"v_lshlrev_b32 v{t1}, 3, v{t1}")
    e(f"v_add_u32 v{t1}, s{s0}, v{t1}")
    e(f"s_movk_i32 s{s2}, 1152")
    e("s_waitcnt vmcnt(0)")
    for jj in range(8):
        if jj % 2 == 0:
            e(f"v_and_b32 v{A+jj}, 0xffff, v{T+jj//2}")
        else:
            e(f"v_lshrrev_b32 v{A+jj}, 16, v{T+jj//2}")
        e(f"v_mad_u32_u24 v{A+jj}, v{A+jj}, s{s2}, v{t1}")
        e(f"buffer_load_dwordx2 v[{L+2*jj}:{L+2*jj+1}], v{A+jj}, s[{sSRDd}:{sSRDd+3}], 0 offen" + (" nt" if nt else ""))
    e(f"s_mov_b32 s{ssel}, 0x05040100")
    e(f"s_mov_b32 s{ssel+1}, 0x07060302")
    e(f"v_lshlrev_b32 v{t0}, 4, v{vlane}")
    e(f"s_mul_i32 s{s3}, s{sj}, {SPLIT_BYTES}")
    e("s_waitcnt vmcnt(0)")
    for u in range(4):
        for q in range(4):
            e(f"v_perm_b32 v{O+4*u+q}, v{L+2*(2*q+1)+u//2}, v{L+2*(2*q)+u//2}, s{ssel+(u&1)}")
    for u in range(4):
        e(f"s_cmp_lt_u32 s{sb}, 8")
        e(f"s_cselect_b32 s{s1}, s{sb}, {u}")
        e(f"s_cselect_b32 s{s0}, {u}, 4")
        e(f"s_mul_i32 s{s2}, s{s1}, 234")
        e(f"s_add_u32 s{s2}, s{s2}, 72")
        e(f"s_cmp_lt_u32 s{s1}, 4")
        e(f"s_mul_i32 s{s1}, s{s1}, 252")
        e(f"s_cselect_b32 s{s2}, s{s1}, s{s2}")
        e(f"s_cselect_b32 s{s1}, 5, 4")
        e(f"s_mul_i32 s{s1}, s{s1}, s{sks}")
        e(f"s_add_u32 s{s1}, s{s1}, s{s0}")
        e(f"s_add_u32 s{s1}, s{s1}, 162")
        e(f"s_add_u32 s{s1}, s{s1}, s{s2}")
        e(f"s_lshl_b32 s{s1}, s{s1}, 10")
        e(f"s_add_u32 s{s1}, s{s1}, s{s3}")
        e(f"buffer_store_dwordx4 v[{O+4*u}:{O+4*u+3}], v{t0}, s[{sSRDW}:{sSRDW+3}], s{s1} offen")

def perm_table(a, label):
    a(".p2align 4")
    a(f"{label}:")
    p = sigma_to_f()
    for i in range(0, 576, 16):
        a("    .short " + ", ".join(str(x) for x in p[i:i+16]))

def gen_kp(a, name="kp_kernel"):
    kernel_begin(a, name)
    e = a.e
    e("s_cmp_ge_u32 s2, 648")
    e(f"s_cbranch_scc1 {name}_done")
    e("s_load_dwordx4 s[4:7], s[0:1], 40")
    e("s_load_dwordx2 s[8:9], s[0:1], 56")
    e("s_load_dwordx2 s[10:11], s[0:1], 80")
    e("v_lshrrev_b32 v1, 6, v0")
    e("v_and_b32 v2, 63, v0")
    e("v_readfirstlane_b32 s12, v1")
    e("s_lshl_b32 s13, s2, 2")
    e("s_add_u32 s12, s12, s13")
    e("s_waitcnt lgkmcnt(0)")
    srd_off(a, 16, 10, 11, WS_W, WS_W_BYTES)
    e("s_cmp_ge_u32 s12, 1296")
    e(f"s_cbranch_scc1 {name}_w2")
    pack_w1_task(a, 12, 2, 4, 6, 16, 24, 4)
    e(f"s_branch {name}_done")
    a.label(f"{name}_w2")
    e("s_sub_u32 s12, s12, 1296")
    srd(a, 20, "s8", "s9", 4608*576*2)
    e("s_getpc_b64 s[14:15]")
    a.label(f"{name}_pc")
    e(f"s_add_u32 s14, s14, {name}_tab-{name}_pc")
    e("s_addc_u32 s15, s15, 0")
    pack_w2_task(a, 12, 2, 20, 16, 14, 24, 4)
    a.label(f"{name}_done")
    e("s_endpgm")
    perm_table(a, f"{name}_tab")
    return kernel_desc(name, 80, 48, 80)

GC0 = -2.0*0.7978845608028654*1.4426950408889634
GC1 = GC0*0.044715
import struct
def f2u(x): return struct.unpack("<I", struct.pack("<f", x))[0]

def gen_k3(a, name="k3_kernel", R=16, ts=False, pf=True, pk=False, xs=1, prio=0):
    kernel_begin(a, name)
    e = a.e
    vLane16 = 1
    vAe, vAo = 2, 3
    vAe2, vAo2 = 4, 5
    vWA, vWB, vWC = 6, 7, 8
    vC0 = 9
    vT = 10
    B0 = 16
    RING = 48
    ACC = RING + 4*R
    TMP = ACC + 80
    NV = TMP + 40
    assert NV <= 256, NV
    sW = 8
    sH = 12
    sP = 16
    sOff = 20
    sWave = 21
    sC1 = 22
    sTS = 24
    def stamp(i):
        if ts:
            e(f"s_memtime s[{40+2*i}:{41+2*i}]")
    e("s_cmp_ge_u32 s2, 256")
    e(f"s_cbranch_scc1 {name}_done")
    stamp(0)
    if ts: e("s_memrealtime s[60:61]")
    e("s_load_dwordx2 s[4:5], s[0:1], 80")
    e("v_lshrrev_b32 v10, 6, v0")
    e("v_and_b32 v11, 63, v0")
    e(f"v_readfirstlane_b32 s{sWave}, v10")
    import math
    lx = int(math.log2(xs)); ng = 8//xs; lng = int(math.log2(ng))
    e("s_and_b32 s28, s2, 7")
    e("s_lshr_b32 s29, s2, 3")
    e(f"s_and_b32 s6, s28, {ng-1}")
    e(f"s_lshl_b32 s6, s6, {lx}")
    e(f"s_and_b32 s30, s29, {xs-1}")
    e(f"s_add_u32 s6, s6, s30")
    e(f"s_lshr_b32 s7, s28, {lng}")
    e(f"s_mul_i32 s7, s7, {32//xs}")
    e(f"s_lshr_b32 s30, s29, {lx}")
    e(f"s_add_u32 s7, s7, s30")
    e(f"v_lshlrev_b32 v{vLane16}, 4, v11")
    e("s_waitcnt lgkmcnt(0)")
    e(f"s_mul_i32 s28, s6, {SPLIT_BYTES}")
    e(f"s_add_u32 s28, s28, {WS_W}")
    srd_off(a, sW, 4, 5, "s28", SPLIT_BYTES)
    e(f"s_mul_i32 s28, s7, {P_BLK}")
    e(f"s_add_u32 s28, s28, {WS_H}")
    srd_off(a, sH, 4, 5, "s28", P_BLK)
    e(f"s_lshl_b32 s29, s6, 5")
    e(f"s_add_u32 s29, s29, s7")
    e(f"s_mul_i32 s28, s29, {P_BLK}")
    e(f"s_add_u32 s28, s28, {WS_P}")
    srd_off(a, sP, 4, 5, "s28", P_BLK)
    if ts:
        srd_off(a, sTS, 4, 5, WS_TS, 0x100000)
    X = ACC
    e("v_lshrrev_b32 v12, 3, v0")
    e("v_and_b32 v13, 7, v0")
    e("v_mul_u32_u24 v14, 1152, v12")
    e("v_lshl_add_u32 v15, v13, 4, v14")
    for i in range(9):
        e(f"buffer_load_dwordx4 v[{X+4*i}:{X+4*i+3}], v15, s[{sH}:{sH+3}], 0 offen offset:{i*128}")
    e("s_barrier")
    e(f"s_mul_i32 s28, s{sWave}, 252")
    e(f"s_mul_i32 s29, s{sWave}, 234")
    e(f"s_add_u32 s29, s29, 72")
    e(f"s_cmp_lt_u32 s{sWave}, 4")
    e(f"s_cselect_b32 s28, s28, s29")
    e(f"s_lshl_b32 s{sOff}, s28, 10")
    npf = 0
    if pf:
        e(f"s_mul_i32 s28, s7, 62208")
        e(f"s_lshl_b32 s29, s{sWave}, 13")
        e(f"s_add_u32 s28, s28, s29")
        e(f"v_lshlrev_b32 v10, 7, v11")
        e(f"buffer_load_dword v{TMP+39}, v10, s[{sW}:{sW+3}], s28 offen")
        npf = 1
    state = {"issued": 0, "soff_base": 0}
    def total_frags(cls):
        return 162 + (90 if cls == 0 else 72)
    def issue(n, slot):
        blk = n // 4
        while state["soff_base"] < blk:
            e(f"s_add_u32 s{sOff}, s{sOff}, 4096")
            state["soff_base"] += 1
        r = RING + 4*slot
        e(f"buffer_load_dwordx4 v[{r}:{r+3}], v{vLane16}, s[{sW}:{sW+3}], s{sOff} offen offset:{(n%4)*1024}")
    for n in range(R):
        issue(n, n % R)
    e("v_and_b32 v10, 15, v11")
    e("v_lshrrev_b32 v14, 4, v11")
    e("v_lshrrev_b32 v12, 1, v10")
    e("v_mul_u32_u24 v13, 1152, v10")
    e("v_xor_b32 v10, v14, v12")
    e(f"v_lshl_add_u32 v{vAe}, v10, 4, v13")
    e("v_xor_b32 v10, 4, v10")
    e(f"v_lshl_add_u32 v{vAo}, v10, 4, v13")
    e(f"v_add_u32 v{vAe2}, {P_BLK}, v{vAe}")
    e(f"v_add_u32 v{vAo2}, {P_BLK}, v{vAo}")
    e(f"s_mul_i32 s28, s{sWave}, 9")
    e(f"v_add_u32 v13, {P_BLK}, v13")
    e(f"v_add_u32 v10, s28, v14")
    e(f"v_xor_b32 v10, v10, v12")
    e(f"v_lshl_add_u32 v{vWA}, v10, 4, v13")
    e(f"s_add_u32 s28, s28, 4")
    e(f"v_add_u32 v10, s28, v14")
    e(f"v_xor_b32 v10, v10, v12")
    e(f"v_lshl_add_u32 v{vWB}, v10, 4, v13")
    e(f"s_add_u32 s28, s28, 4")
    e(f"v_xor_b32 v10, s28, v12")
    e(f"v_lshl_add_u32 v10, v10, 4, v13")
    e(f"v_lshl_add_u32 v{vWC}, v14, 2, v10")
    e(f"v_mov_b32 v{vC0}, {hex(f2u(GC0))}")
    e(f"s_mov_b32 s{sC1}, {hex(f2u(GC1))}")
    e(f"s_waitcnt vmcnt({R+npf})")
    stamp(1)
    s1a, s1b, s2a, s2b = TMP, TMP+1, TMP+2, TMP+3
    for r in (s1a, s1b, s2a, s2b):
        e(f"v_mov_b32 v{r}, 0")
    e(f"v_mov_b32 v{TMP+4}, 0x3f803f80")
    for i in range(36):
        e(f"v_dot2c_f32_bf16 v{s1a+(i&1)}, v{X+i}, v{TMP+4}")
        e(f"v_dot2c_f32_bf16 v{s2a+(i&1)}, v{X+i}, v{X+i}")
    e("s_nop 3")
    e(f"v_add_f32 v{s1a}, v{s1a}, v{s1b}")
    e(f"v_add_f32 v{s2a}, v{s2a}, v{s2b}")
    for dpp in ("quad_perm:[1,0,3,2]", "quad_perm:[2,3,0,1]", "row_half_mirror"):
        e("s_nop 1")
        e(f"v_add_f32_dpp v{s1a}, v{s1a}, v{s1a} {dpp} row_mask:0xf bank_mask:0xf")
        e(f"v_add_f32_dpp v{s2a}, v{s2a}, v{s2a} {dpp} row_mask:0xf bank_mask:0xf")
    inv = f2u(1.0/576)
    e(f"v_mul_f32 v{s1a}, {hex(inv)}, v{s1a}")
    e(f"v_mul_f32 v{s2a}, {hex(inv)}, v{s2a}")
    e(f"v_fma_f32 v{s2a}, -v{s1a}, v{s1a}, v{s2a}")
    e(f"v_max_f32 v{s2a}, 0, v{s2a}")
    e(f"v_add_f32 v{s2a}, {hex(f2u(1e-5))}, v{s2a}")
    e(f"v_rsq_f32 v{s2a}, v{s2a}")
    e("s_nop 0")
    e(f"v_mul_f32 v{s1a}, v{s1a}, v{s2a}")
    e(f"v_sub_f32 v{s1a}, 0, v{s1a}")
    e("v_lshrrev_b32 v12, 3, v0")
    e("v_and_b32 v13, 7, v0")
    e("v_bfe_u32 v10, v12, 1, 3")
    e("v_xor_b32 v10, v10, v13")
    e("v_mul_u32_u24 v14, 1152, v12")
    e("v_lshl_add_u32 v15, v10, 4, v14")
    U = TMP+8
    for i in range(9):
        for q in range(4):
            x = X+4*i+q
            e(f"v_lshlrev_b32 v{U+2*q}, 16, v{x}")
            e(f"v_and_b32 v{U+2*q+1}, 0xffff0000, v{x}")
        for q in range(4):
            e(f"v_fma_f32 v{U+2*q}, v{U+2*q}, v{s2a}, v{s1a}")
            e(f"v_fma_f32 v{U+2*q+1}, v{U+2*q+1}, v{s2a}, v{s1a}")
        for q in range(4):
            e(f"v_cvt_pk_bf16_f32 v{X+4*i+q}, v{U+2*q}, v{U+2*q+1}")
        e(f"ds_write_b128 v15, v[{X+4*i}:{X+4*i+3}] offset:{i*128}")
    e("s_waitcnt lgkmcnt(0)")
    e("s_barrier")
    stamp(2)

    def bread(buf, ks, ve, vo):
        for tt in range(4):
            r = B0 + buf*16 + tt*4
            v = ve if ks % 2 == 0 else vo
            e(f"ds_read_b128 v[{r}:{r+3}], v{v} offset:{tt*18432 + (ks//2)*128}")

    def gemm_group(n0, nu, ve, vo, total, first_bread=True, next_bread=None):
        if prio == 1: e("s_setprio 1")
        if first_bread:
            bread(0, 0, ve, vo)
        n = n0
        for ks in range(18):
            cur = ks % 2
            if ks < 17:
                bread(1-cur, ks+1, ve, vo)
                lg = 4
            else:
                lg = 0
            for u in range(nu):
                slot = n % R
                outstanding_after = min(total - 1 - n, R - 1)
                w = f"s_waitcnt vmcnt({outstanding_after})"
                if u == 0: w += f" lgkmcnt({lg})"
                e(w)
                ra = RING + 4*slot
                for tt in range(4):
                    acc = ACC + (u*4+tt)*4
                    rb_ = B0 + cur*16 + tt*4
                    c = "0" if ks == 0 else f"v[{acc}:{acc+3}]"
                    e(f"v_mfma_f32_16x16x32_bf16 v[{acc}:{acc+3}], v[{ra}:{ra+3}], v[{rb_}:{rb_+3}], {c}")
                if n + R < total:
                    issue(n + R, slot)
                n += 1
        if prio == 1: e("s_setprio 0")
        return n

    def gelu(us, vaddr, width):
        for tt in range(4):
            els = [(u, r) for u in us for r in range(2)]
            nE = len(els)
            T1 = TMP
            T2 = TMP + 8
            Dw = TMP + 16 + (tt%2)*4
            G = lambda u, r: ACC + (u*4+tt)*4 + r
            Uu = lambda u, r: ACC + (u*4+tt)*4 + 2 + r
            for i, (u, r) in enumerate(els): e(f"v_mul_f32 v{T1+i}, v{G(u,r)}, v{G(u,r)}")
            for i, (u, r) in enumerate(els): e(f"v_fma_f32 v{T1+i}, v{T1+i}, s{sC1}, v{vC0}")
            for i, (u, r) in enumerate(els): e(f"v_mul_f32 v{T1+i}, v{T1+i}, v{G(u,r)}")
            for i, (u, r) in enumerate(els): e(f"v_exp_f32 v{T1+i}, v{T1+i}")
            for i, (u, r) in enumerate(els): e(f"v_mul_f32 v{T2+i}, v{G(u,r)}, v{Uu(u,r)}")
            for i, (u, r) in enumerate(els): e(f"v_add_f32 v{T1+i}, 1.0, v{T1+i}")
            for i, (u, r) in enumerate(els): e(f"v_rcp_f32 v{T1+i}, v{T1+i}")
            if nE < 4: e("s_nop 0")
            for i, (u, r) in enumerate(els): e(f"v_mul_f32 v{T2+i}, v{T2+i}, v{T1+i}")
            for k in range(nE//2): e(f"v_cvt_pk_bf16_f32 v{Dw+k}, v{T2+2*k}, v{T2+2*k+1}")
            if width == 4:
                e(f"ds_write_b128 v{vaddr}, v[{Dw}:{Dw+3}] offset:{tt*18432}")
            else:
                e(f"ds_write_b32 v{vaddr}, v{Dw} offset:{tt*18432}")

    lab_c1 = f"{name}_c1"
    TOTAL_BIG = 10**9
    n = gemm_group(0, 4, vAe, vAo, TOTAL_BIG)
    stamp(3)
    e("s_nop 7")
    gelu([0,1,2,3], vWA, 4)
    stamp(4)
    n = gemm_group(n, 5, vAe, vAo, TOTAL_BIG)
    stamp(5)
    e("s_nop 7")
    gelu([0,1,2,3], vWB, 4)
    gelu([4], vWC, 1)
    e("s_waitcnt lgkmcnt(0)")
    stamp(6)
    e("s_barrier")
    stamp(7)
    assert n == 162
    saved = dict(state)
    e(f"s_cmp_ge_u32 s{sWave}, 4")
    e(f"s_cbranch_scc1 {lab_c1}")
    for cls in (0, 1):
        if cls == 1:
            a.label(lab_c1)
            state.update(saved)
        nt = 5 if cls == 0 else 4
        gemm_group(162, nt, vAe2, vAo2, total_frags(cls))
        stamp(8)
        e("s_nop 7")
        e(f"s_lshl_b32 s28, s{sWave}, 13")
        for tt in range(4):
            Dw = TMP + (tt%2)*8
            for r in range(4):
                e(f"v_cvt_pk_bf16_f32 v{Dw+2*r}, v{ACC+(0*4+tt)*4+r}, v{ACC+(1*4+tt)*4+r}")
                e(f"v_cvt_pk_bf16_f32 v{Dw+2*r+1}, v{ACC+(2*4+tt)*4+r}, v{ACC+(3*4+tt)*4+r}")
            e(f"buffer_store_dwordx4 v[{Dw}:{Dw+3}], v{vLane16}, s[{sP}:{sP+3}], s28 offen offset:{(tt%2)*2048}")
            e(f"buffer_store_dwordx4 v[{Dw+4}:{Dw+7}], v{vLane16}, s[{sP}:{sP+3}], s28 offen offset:{(tt%2)*2048+1024}")
            if tt == 1:
                e(f"s_add_u32 s28, s28, 4096")
        if cls == 0:
            e(f"s_lshl_b32 s28, s{sWave}, 11")
            e(f"s_add_u32 s28, s28, 65536")
            e(f"v_lshrrev_b32 v10, 1, v{vLane16}")
            for tt in range(4):
                Dw = TMP + 16 + tt*2
                e(f"v_cvt_pk_bf16_f32 v{Dw}, v{ACC+(4*4+tt)*4+0}, v{ACC+(4*4+tt)*4+1}")
                e(f"v_cvt_pk_bf16_f32 v{Dw+1}, v{ACC+(4*4+tt)*4+2}, v{ACC+(4*4+tt)*4+3}")
                e(f"buffer_store_dwordx2 v[{Dw}:{Dw+1}], v10, s[{sP}:{sP+3}], s28 offen offset:{tt*512}")
        if ts:
            e("s_waitcnt vmcnt(0)")
            stamp(9)
            e("s_memrealtime s[62:63]")
            e("s_waitcnt lgkmcnt(0)")
            e(f"s_lshl_b32 s28, s2, 3")
            e(f"s_add_u32 s28, s28, s{sWave}")
            e(f"s_lshl_b32 s28, s28, 6")
            for i in range(12):
                e(f"v_mov_b32 v{TMP+i}, s{40+2*i}")
            e("v_mov_b32 v10, 0")
            e("v_cmp_eq_u32 vcc, 0, v1")
            e("s_and_saveexec_b64 s[30:31], vcc")
            for i in range(12):
                e(f"buffer_store_dword v{TMP+i}, v10, s[{sTS}:{sTS+3}], s28 offen offset:{i*4}")
        e("s_endpgm")
    a.label(f"{name}_done")
    e("s_endpgm")
    return kernel_desc(name, 256, 96, 256)

def gen_k4(a, name="k4_kernel"):
    kernel_begin(a, name)
    e = a.e
    e("s_cmp_ge_u32 s2, 544")
    e(f"s_cbranch_scc1 {name}_done")
    e("s_load_dwordx2 s[4:5], s[0:1], 80")
    e("s_load_dwordx2 s[6:7], s[0:1], 64")
    e("v_lshrrev_b32 v1, 6, v0")
    e("v_and_b32 v2, 63, v0")
    e("v_readfirstlane_b32 s20, v1")
    e("s_lshl_b32 s21, s2, 2")
    e("s_add_u32 s20, s20, s21")
    e("v_and_b32 v3, 15, v2")
    e("v_lshrrev_b32 v4, 4, v2")
    e("s_waitcnt lgkmcnt(0)")
    srd_off(a, 8, 4, 5, WS_P, WS_P_BYTES)
    srd_off(a, 12, 4, 5, WS_H, WS_H_BYTES)
    srd(a, 16, "s6", "s7", S*D*2)
    e("s_cmp_ge_u32 s20, 2048")
    e(f"s_cbranch_scc1 {name}_b")
    e("s_lshr_b32 s22, s20, 6")
    e("s_and_b32 s23, s20, 63")
    e(f"s_mul_i32 s24, s22, {P_BLK}")
    e("s_lshl_b32 s25, s23, 10")
    e("s_add_u32 s24, s24, s25")
    e("v_lshlrev_b32 v5, 4, v2")
    for j in range(8):
        e(f"buffer_load_dwordx4 v[{16+4*j}:{19+4*j}], v5, s[8:11], s24 offen")
        if j < 7: e(f"s_add_u32 s24, s24, {32*P_BLK}")
    e("s_lshr_b32 s25, s23, 3")
    e("s_bfe_u32 s26, s23, 0x20001")
    e("s_and_b32 s27, s23, 1")
    e("s_lshl_b32 s28, s22, 6")
    e("s_lshl_b32 s26, s26, 4")
    e("s_add_u32 s28, s28, s26")
    e("s_mul_i32 s28, s28, 1152")
    e("s_lshl_b32 s25, s25, 7")
    e("s_add_u32 s28, s28, s25")
    e("s_lshl_b32 s27, s27, 4")
    e("s_add_u32 s28, s28, s27")
    e("v_mul_u32_u24 v6, 1152, v3")
    e("v_lshl_add_u32 v6, v4, 5, v6")
    e("buffer_load_dwordx4 v[48:51], v6, s[12:15], s28 offen")
    e("s_waitcnt vmcnt(0)")
    for q in range(4):
        e(f"v_lshlrev_b32 v{8+2*q}, 16, v{48+q}")
        e(f"v_and_b32 v{9+2*q}, 0xffff0000, v{48+q}")
    for j in range(8):
        for q in range(4):
            e(f"v_lshlrev_b32 v{56+2*q}, 16, v{16+4*j+q}")
            e(f"v_and_b32 v{57+2*q}, 0xffff0000, v{16+4*j+q}")
        for q in range(8):
            e(f"v_add_f32 v{8+q}, v{8+q}, v{56+q}")
    for q in range(4):
        e(f"v_cvt_pk_bf16_f32 v{16+q}, v{8+2*q}, v{9+2*q}")
    e("buffer_store_dwordx4 v[16:19], v6, s[16:19], s28 offen")
    e("s_endpgm")
    a.label(f"{name}_b")
    e("s_sub_u32 s20, s20, 2048")
    e("s_lshr_b32 s22, s20, 2")
    e("s_and_b32 s23, s20, 3")
    e(f"s_mul_i32 s24, s22, {P_BLK}")
    e("s_lshl_b32 s25, s23, 9")
    e("s_add_u32 s24, s24, s25")
    e("s_add_u32 s24, s24, 65536")
    e("v_lshlrev_b32 v5, 3, v2")
    e("v_add_u32 v7, 4096, v5")
    for j in range(8):
        for u in range(4):
            r = 16 + (j*4+u)*2
            e(f"buffer_load_dwordx2 v[{r}:{r+1}], v{5 if u < 2 else 7}, s[8:11], s24 offen offset:{(u%2)*2048}")
        if j < 7: e(f"s_add_u32 s24, s24, {32*P_BLK}")
    e("s_lshl_b32 s28, s22, 6")
    e("s_lshl_b32 s26, s23, 4")
    e("s_add_u32 s28, s28, s26")
    e("s_mul_i32 s28, s28, 1152")
    e("s_add_u32 s28, s28, 1024")
    e("v_mul_u32_u24 v6, 1152, v3")
    e("v_lshl_add_u32 v6, v4, 5, v6")
    e("buffer_load_dwordx4 v[80:83], v6, s[12:15], s28 offen")
    e("buffer_load_dwordx4 v[84:87], v6, s[12:15], s28 offen offset:16")
    e("s_waitcnt vmcnt(0)")
    for q in range(8):
        e(f"v_lshlrev_b32 v{88+2*q}, 16, v{80+q}")
        e(f"v_and_b32 v{89+2*q}, 0xffff0000, v{80+q}")
    for j in range(8):
        for u in range(4):
            r = 16 + (j*4+u)*2
            e(f"v_lshlrev_b32 v104, 16, v{r}")
            e(f"v_and_b32 v105, 0xffff0000, v{r}")
            e(f"v_lshlrev_b32 v106, 16, v{r+1}")
            e(f"v_and_b32 v107, 0xffff0000, v{r+1}")
            for rr in range(4):
                e(f"v_add_f32 v{88+4*rr+u}, v{88+4*rr+u}, v{104+rr}")
    for q in range(8):
        e(f"v_cvt_pk_bf16_f32 v{16+q}, v{88+2*q}, v{89+2*q}")
    e("buffer_store_dwordx4 v[16:19], v6, s[16:19], s28 offen")
    e("buffer_store_dwordx4 v[20:23], v6, s[16:19], s28 offen offset:16")
    a.label(f"{name}_done")
    e("s_endpgm")
    return kernel_desc(name, 112, 48, 112)

def build_ffn_test(fname, ts=True, **kw):
    a = Asm()
    a(HEADER.rstrip())
    a("; @launch kernel=kp_kernel grid=(648,1,1) block=(256,1,1) lds=0")
    a(f"; @launch kernel=k3_kernel grid=(256,1,1) block=(512,1,1) lds={2*P_BLK}")
    a("; @launch kernel=k4_kernel grid=(544,1,1) block=(256,1,1) lds=0")
    a('.amdgcn_target "amdgcn-amd-amdhsa--gfx950"')
    a(".text")
    d = [gen_kp(a), gen_k3(a, ts=ts, **kw), gen_k4(a)]
    a('.section .rodata,"a"')
    for x in d:
        a(".p2align 6"); a(x)
    open(fname, "w").write(a.text())

if __name__ == "__main__":
    build_ffn_test("ffn_a.s", pf=False, xs=2)
    build_ffn_test("ffn_b.s", pf=False, xs=2, prio=1)
    build_ffn_test("ffn_c.s", pf=False, xs=4, prio=1)
    build_ffn_test("ffn_d.s", pf=False, xs=2, prio=1, R=20)
```

```python
from asmlib import *
from common import *
from gen_ffn import magic, sdiv, f2u, GC0, GC1, perm_table
from gen_attn import ln_rows, short_table, softmax9, LOG2E
import gen_attn

sX, sWQKV, sWPHI, sWO, sWG, sWU, sWD, sOUT, sDBG, sWS = 4, 6, 8, 10, 14, 16, 18, 20, 22, 24
sWAVE, sTAG, sSPIN = 26, 27, 28
SC = " sc0 sc1"

def srd(a, d, p, nbytes):
    a.e(f"s_mov_b32 s{d}, s{p}"); a.e(f"s_mov_b32 s{d+1}, s{p+1}")
    a.e(f"s_mov_b32 s{d+2}, {hex(nbytes)}"); a.e(f"s_mov_b32 s{d+3}, 0x20000")
def srd_ws(a, d, off, nbytes):
    o = hex(off) if isinstance(off, int) else off
    a.e(f"s_add_u32 s{d}, s{sWS}, {o}"); a.e(f"s_addc_u32 s{d+1}, s{sWS+1}, 0")
    a.e(f"s_mov_b32 s{d+2}, {hex(nbytes)}"); a.e(f"s_mov_b32 s{d+3}, 0x20000")

class Ctx:
    def __init__(self, ts): self.ts = ts; self.nst = 0

def stamp(a, C, i):
    if C.ts:
        a.e(f"s_memrealtime s[{60+2*i}:{61+2*i}]")

def signal(a, b, lab, arr_stride_idx="s2"):
    e = a.e
    e("s_waitcnt vmcnt(0) lgkmcnt(0)")
    e("s_barrier")
    e(f"s_cmp_lg_u32 s{sWAVE}, 0")
    e(f"s_cbranch_scc1 {lab}")
    srd_ws(a, 32, WS_FL + b*256*FL_STRIDE, 256*FL_STRIDE)
    e(f"s_lshl_b32 s29, s2, 7")
    e(f"v_mov_b32 v4, s{sTAG}")
    e("v_mov_b32 v5, 0")
    e("s_mov_b64 exec, 1")
    e(f"buffer_store_dword v4, v5, s[32:35], s29 offen{SC}")
    e("s_mov_b64 exec, -1")
    a.label(lab)

def poll_all(a, b, lab):
    e = a.e
    srd_ws(a, 32, WS_FL + b*256*FL_STRIDE, 256*FL_STRIDE)
    e(f"v_lshlrev_b32 v4, 7, v1")
    e(f"v_add_u32 v5, 0x2000, v4")
    e(f"v_add_u32 v6, 0x4000, v4")
    e(f"v_add_u32 v7, 0x6000, v4")
    a.label(lab)
    for q in range(4):
        e(f"buffer_load_dword v{8+q}, v{4+q}, s[32:35], 0 offen{SC}")
    e("s_waitcnt vmcnt(0)")
    for q in range(4):
        e(f"v_xor_b32 v{8+q}, s{sTAG}, v{8+q}")
    e("v_or_b32 v8, v8, v9")
    e("v_or3_b32 v8, v8, v10, v11")
    e("v_cmp_ne_u32 vcc, 0, v8")
    e(f"s_cmp_eq_u32 s{sSPIN}, 0")
    e(f"s_cbranch_scc1 {lab}_x")
    e(f"s_sub_u32 s{sSPIN}, s{sSPIN}, 1")
    e(f"s_cbranch_vccnz {lab}")
    a.label(f"{lab}_x")

def poll_list(a, b, sbase, n, stride_wg, lab):
    e = a.e
    srd_ws(a, 32, WS_FL + b*256*FL_STRIDE, 256*FL_STRIDE)
    e(f"v_mul_u32_u24 v4, {stride_wg*FL_STRIDE}, v1")
    e(f"s_lshl_b32 s29, s{sbase}, 7")
    e(f"s_mov_b64 exec, {(1<<n)-1}")
    a.label(lab)
    e(f"buffer_load_dword v8, v4, s[32:35], s29 offen{SC}")
    e("s_waitcnt vmcnt(0)")
    e(f"v_cmp_ne_u32 vcc, s{sTAG}, v8")
    e(f"s_cmp_eq_u32 s{sSPIN}, 0")
    e(f"s_cbranch_scc1 {lab}_x")
    e(f"s_sub_u32 s{sSPIN}, s{sSPIN}, 1")
    e(f"s_cbranch_vccnz {lab}")
    a.label(f"{lab}_x")
    e("s_mov_b64 exec, -1")

def pack_task(a, lab, sT, vt=16, st=80, nt=True):
    e = a.e
    ntf = " nt" if nt else ""
    srd_ws(a, 36, WS_W, WS_W_BYTES)
    e(f"s_cmp_ge_u32 s{sT}, 1296")
    e(f"s_cbranch_scc1 {lab}_w2")
    sj, sb, sks, s0, s1, s2, s3 = [st+i for i in range(7)]
    sstr = st+8; ssel = st+10
    sdiv(a, f"s{sj}", f"s{sT}", 162)
    e(f"s_mul_i32 s{s0}, s{sj}, 162")
    e(f"s_sub_u32 s{s0}, s{sT}, s{s0}")
    sdiv(a, f"s{sb}", f"s{s0}", 18)
    e(f"s_mul_i32 s{s1}, s{sb}, 18")
    e(f"s_sub_u32 s{sks}, s{s0}, s{s1}")
    e(f"s_mul_i32 s{s0}, s{sks}, 294912")
    e(f"s_mul_i32 s{s1}, s{sj}, 1152")
    e(f"s_add_u32 s{s0}, s{s0}, s{s1}")
    e(f"s_lshl_b32 s{s1}, s{sb}, 7")
    e(f"s_add_u32 s{s0}, s{s0}, s{s1}")
    L, O, va = vt, vt+32, vt+64
    t0, t1, t2, t3 = vt+66, vt+67, vt+68, vt+69
    e(f"v_lshrrev_b32 v{t0}, 4, v1")
    e(f"v_mul_u32_u24 v{t0}, 0x12000, v{t0}")
    e(f"v_bfe_u32 v{t1}, v1, 2, 2")
    e(f"v_lshlrev_b32 v{t1}, 5, v{t1}")
    e(f"v_and_b32 v{t2}, 1, v1")
    e(f"v_lshlrev_b32 v{t2}, 4, v{t2}")
    e(f"v_add3_u32 v{t0}, v{t0}, v{t1}, v{t2}")
    e(f"v_add_u32 v{t0}, s{s0}, v{t0}")
    e(f"v_and_b32 v{t1}, 2, v1")
    e(f"v_cmp_eq_u32 vcc, 0, v{t1}")
    e(f"v_mov_b32 v{t2}, s{sWU}")
    e(f"v_mov_b32 v{t3}, s{sWG}")
    e(f"v_cndmask_b32 v{va}, v{t2}, v{t3}, vcc")
    e(f"v_mov_b32 v{t2}, s{sWU+1}")
    e(f"v_mov_b32 v{t3}, s{sWG+1}")
    e(f"v_cndmask_b32 v{va+1}, v{t2}, v{t3}, vcc")
    e(f"v_add_co_u32 v{va}, vcc, v{va}, v{t0}")
    e(f"s_mov_b32 s{sstr}, 9216")
    e(f"s_mov_b32 s{sstr+1}, 0")
    e(f"v_addc_co_u32 v{va+1}, vcc, 0, v{va+1}, vcc")
    for jj in range(8):
        e(f"global_load_dwordx4 v[{L+4*jj}:{L+4*jj+3}], v[{va}:{va+1}], off{ntf}")
        if jj < 7:
            e(f"v_lshl_add_u64 v[{va}:{va+1}], v[{va}:{va+1}], 0, s[{sstr}:{sstr+1}]")
    e(f"s_mov_b32 s{ssel}, 0x05040100")
    e(f"s_mov_b32 s{ssel+1}, 0x07060302")
    e(f"s_mul_i32 s{s3}, s{sj}, {SPLIT_BYTES}")
    e("s_waitcnt vmcnt(0)")
    for u in range(8):
        for q in range(4):
            e(f"v_perm_b32 v{O+4*u+q}, v{L+4*(2*q+1)+u//2}, v{L+4*(2*q)+u//2}, s{ssel+(u&1)}")
    for u in range(8):
        e(f"s_lshl_b32 s{s0}, s{sb}, 3")
        e(f"s_add_u32 s{s0}, s{s0}, {u}")
        e(f"s_mul_i32 s{s1}, s{s0}, 57")
        e(f"s_lshr_b32 s{s1}, s{s1}, 9")
        e(f"s_mul_i32 s{s2}, s{s1}, 9")
        e(f"s_sub_u32 s{s0}, s{s0}, s{s2}")
        e(f"s_mul_i32 s{s2}, s{s1}, 234")
        e(f"s_add_u32 s{s2}, s{s2}, 72")
        e(f"s_cmp_lt_u32 s{s1}, 4")
        e(f"s_mul_i32 s{s1}, s{s1}, 252")
        e(f"s_cselect_b32 s{s2}, s{s1}, s{s2}")
        e(f"s_mul_i32 s{s1}, s{sks}, 5")
        e(f"s_add_u32 s{s1}, s{s1}, 68")
        e(f"s_lshl_b32 s{st+7}, s{sks}, 2")
        e(f"s_cmp_lt_u32 s{s0}, 4")
        e(f"s_cselect_b32 s{s1}, s{st+7}, s{s1}")
        e(f"s_add_u32 s{s1}, s{s1}, s{s0}")
        e(f"s_add_u32 s{s1}, s{s1}, s{s2}")
        e(f"s_lshl_b32 s{s1}, s{s1}, 10")
        e(f"s_add_u32 s{s1}, s{s1}, s{s3}")
        e(f"buffer_store_dwordx4 v[{O+4*u}:{O+4*u+3}], v2, s[36:39], s{s1} offen{SC}")
    e(f"s_branch {lab}_end")
    a.label(f"{lab}_w2")
    e(f"s_sub_u32 s{sT}, s{sT}, 1296")
    srd(a, 40, sWD, 4608*576*2)
    e("s_getpc_b64 s[44:45]")
    a.label(f"{lab}_pc")
    e(f"s_add_u32 s44, s44, ftab-{lab}_pc")
    e("s_addc_u32 s45, s45, 0")
    sdiv(a, f"s{sj}", f"s{sT}", 162)
    e(f"s_mul_i32 s{s0}, s{sj}, 162")
    e(f"s_sub_u32 s{s0}, s{sT}, s{s0}")
    sdiv(a, f"s{sks}", f"s{s0}", 9)
    e(f"s_mul_i32 s{s1}, s{sks}, 9")
    e(f"s_sub_u32 s{sb}, s{s0}, s{s1}")
    L, O, T, A = vt, vt+16, vt+32, vt+36
    t0, t1 = vt+44, vt+45
    e(f"v_lshrrev_b32 v{t0}, 4, v1")
    e(f"v_lshlrev_b32 v{t0}, 4, v{t0}")
    e(f"s_lshl_b32 s{s0}, s{sks}, 6")
    e(f"v_add_u32 v{t0}, s{s0}, v{t0}")
    e(f"global_load_dwordx4 v[{T}:{T+3}], v{t0}, s[44:45]")
    e(f"s_mul_i32 s{s0}, s{sj}, {576*1152}")
    e(f"s_lshl_b32 s{s1}, s{sb}, 7")
    e(f"s_add_u32 s{s0}, s{s0}, s{s1}")
    e(f"v_and_b32 v{t1}, 15, v1")
    e(f"v_lshlrev_b32 v{t1}, 3, v{t1}")
    e(f"v_add_u32 v{t1}, s{s0}, v{t1}")
    e(f"s_movk_i32 s{s2}, 1152")
    e("s_waitcnt vmcnt(0)")
    for jj in range(8):
        if jj % 2 == 0: e(f"v_and_b32 v{A+jj}, 0xffff, v{T+jj//2}")
        else: e(f"v_lshrrev_b32 v{A+jj}, 16, v{T+jj//2}")
        e(f"v_mad_u32_u24 v{A+jj}, v{A+jj}, s{s2}, v{t1}")
        e(f"buffer_load_dwordx2 v[{L+2*jj}:{L+2*jj+1}], v{A+jj}, s[40:43], 0 offen{ntf}")
    e(f"s_mov_b32 s{ssel}, 0x05040100")
    e(f"s_mov_b32 s{ssel+1}, 0x07060302")
    e(f"s_mul_i32 s{s3}, s{sj}, {SPLIT_BYTES}")
    e("s_waitcnt vmcnt(0)")
    for u in range(4):
        for q in range(4):
            e(f"v_perm_b32 v{O+4*u+q}, v{L+2*(2*q+1)+u//2}, v{L+2*(2*q)+u//2}, s{ssel+(u&1)}")
    for u in range(4):
        e(f"s_cmp_lt_u32 s{sb}, 8")
        e(f"s_cselect_b32 s{s1}, s{sb}, {u}")
        e(f"s_cselect_b32 s{s0}, {u}, 4")
        e(f"s_mul_i32 s{s2}, s{s1}, 234")
        e(f"s_add_u32 s{s2}, s{s2}, 72")
        e(f"s_cmp_lt_u32 s{s1}, 4")
        e(f"s_mul_i32 s{s1}, s{s1}, 252")
        e(f"s_cselect_b32 s{s2}, s{s1}, s{s2}")
        e(f"s_cselect_b32 s{s1}, 3, 2")
        e(f"s_mul_i32 s{s1}, s{s1}, s{sks}")
        e(f"s_add_u32 s{s1}, s{s1}, 196")
        e(f"s_lshl_b32 s{st+7}, s{sks}, 1")
        e(f"s_add_u32 s{st+7}, s{st+7}, 162")
        e(f"s_cmp_lt_u32 s{s0}, 2")
        e(f"s_cselect_b32 s{s1}, s{st+7}, s{s1}")
        e(f"s_add_u32 s{s1}, s{s1}, s{s0}")
        e(f"s_add_u32 s{s1}, s{s1}, s{s2}")
        e(f"s_lshl_b32 s{s1}, s{s1}, 10")
        e(f"s_add_u32 s{s1}, s{s1}, s{s3}")
        e(f"buffer_store_dwordx4 v[{O+4*u}:{O+4*u+3}], v2, s[36:39], s{s1} offen{SC}")
    a.label(f"{lab}_end")

def p0_ln(a, C):
    e = a.e
    srd(a, 36, sX, S*D*2)
    srd_ws(a, 40, WS_XNF, XNF_BYTES)
    X, TMP = 16, 56
    e("v_lshrrev_b32 v4, 3, v1")
    e("v_and_b32 v5, 7, v1")
    e("v_mul_u32_u24 v6, 1152, v4")
    e("v_lshl_add_u32 v6, v5, 4, v6")
    e("s_mul_i32 s52, s2, 9216")
    for i in range(9):
        e(f"buffer_load_dwordx4 v[{X+4*i}:{X+4*i+3}], v6, s[36:39], s52 offen offset:{i*128}")
    e(f"s_cmp_ge_u32 s2, {KV_BYTES//1024}")
    e(f"s_cbranch_scc1 p0_nokv")
    srd_ws(a, 44, WS_KV, KV_BYTES)
    for i in range(4): e(f"v_mov_b32 v{72+i}, 0")
    e("s_lshl_b32 s53, s2, 10")
    e(f"buffer_store_dwordx4 v[72:75], v2, s[44:47], s53 offen{SC}")
    a.label("p0_nokv")
    e("v_lshrrev_b32 v7, 1, v5")
    e("v_lshlrev_b32 v7, 10, v7")
    e("v_and_b32 v8, 1, v5")
    e("v_lshl_add_u32 v7, v8, 3, v7")
    e("s_and_b32 s53, s2, 3")
    e("s_lshl_b32 s53, s53, 3")
    e("v_add_u32 v8, s53, v4")
    e("v_lshl_add_u32 v7, v8, 4, v7")
    e("s_lshr_b32 s53, s2, 2")
    e("s_mul_i32 s53, s53, 36864")
    e("s_waitcnt vmcnt(0)")
    ln_rows(e, X, TMP)
    for i in range(9):
        e(f"buffer_store_dwordx2 v[{X+4*i}:{X+4*i+1}], v7, s[40:43], s53 offen{SC}")
        e(f"buffer_store_dwordx2 v[{X+4*i+2}:{X+4*i+3}], v7, s[40:43], s53 offen offset:512{SC}")
        if i < 8: e("s_add_u32 s53, s53, 4096")

def p0_fold(a, C, sT):
    e = a.e
    sdiv(a, "s52", f"s{sT}", 18)
    e("s_mul_i32 s53, s52, 18")
    e(f"s_sub_u32 s53, s{sT}, s53")
    srd(a, 36, sWQKV, 576*1728*2)
    srd(a, 40, sWPHI, 32*18*18*2)
    srd_ws(a, 44, WS_WPF, WPF_BYTES)
    e("v_and_b32 v13, 31, v1")
    e("v_lshrrev_b32 v4, 5, v1")
    e("v_mul_u32_u24 v5, 3456, v13")
    e("v_lshl_add_u32 v6, v4, 4, v5")
    e(f"s_mul_i32 s54, s53, {32*3456}")
    e("s_mul_i32 s55, s52, 36")
    e("s_add_u32 s54, s54, s55")
    XQ, XK, ZV, YQ, YK = 8+8, 12+8, 16+8, 20+8, 24+8
    e(f"buffer_load_dwordx4 v[{XQ}:{XQ+3}], v6, s[36:39], s54 offen")
    e(f"buffer_load_dwordx4 v[{XK}:{XK+3}], v6, s[36:39], s54 offen offset:1152")
    e(f"buffer_load_dwordx4 v[{ZV}:{ZV+3}], v6, s[36:39], s54 offen offset:2304")
    e(f"buffer_load_dword v{YQ}, v5, s[36:39], s54 offen offset:32")
    e(f"buffer_load_dword v{YK}, v5, s[36:39], s54 offen offset:{1152+32}")
    e(f"buffer_load_dword v{YQ+1}, v5, s[36:39], s54 offen offset:{2304+32}")
    e("v_bfe_u32 v7, v13, 2, 1")
    e("v_lshrrev_b32 v36, 3, v13")
    e("v_and_b32 v37, 3, v13")
    e("v_lshl_add_u32 v36, v36, 2, v37")
    e("v_mul_u32_u24 v37, 9, v7")
    e("v_add_u32 v38, v37, v36")
    e("v_lshlrev_b32 v39, 1, v38")
    e("v_mov_b32 v40, 0x40000000")
    e("v_cmp_gt_u32 vcc, 9, v36")
    e("s_mul_i32 s55, s52, 648")
    e("s_nop 0")
    e("v_cndmask_b32 v39, v40, v39, vcc")
    e("v_mul_u32_u24 v41, 288, v4")
    e("v_add_u32 v41, v41, v39")
    BX, BY0, BY1, BZ0, BZ1 = 44, 48, 52, 56, 60
    for j in range(8):
        e(f"buffer_load_ushort v{112+j}, v41, s[40:43], s55 offen offset:{j*36}")
    e("v_cmp_eq_u32 vcc, 0, v4")
    e("s_nop 1")
    e("v_cndmask_b32 v42, v40, v39, vcc")
    e(f"buffer_load_ushort v120, v42, s[40:43], s55 offen offset:{16*36}")
    e(f"buffer_load_ushort v121, v42, s[40:43], s55 offen offset:{17*36}")
    e("v_add_u32 v64, -9, v38")
    e("v_mov_b32 v65, -100")
    e("v_cmp_lt_u32 vcc, 8, v36")
    e("s_nop 1")
    e("v_cndmask_b32 v66, v65, v64, vcc")
    e("v_add_u32 v64, 7, v64")
    e("v_add_u32 v67, -9, v36")
    e("v_cmp_gt_u32 vcc, 2, v67")
    e("s_nop 1")
    e("v_cndmask_b32 v67, v65, v64, vcc")
    e("v_lshlrev_b32 v68, 3, v4")
    e("v_mov_b32 v69, 0x3f80")
    for (ereg, BZ, BY) in ((66, BZ0, BY0), (67, BZ1, BY1)):
        e(f"v_sub_u32 v70, v{ereg}, v68")
        e("v_and_b32 v71, 1, v70")
        e("v_lshlrev_b32 v71, 4, v71")
        e("v_lshlrev_b32 v71, v71, v69")
        e("v_ashrrev_i32 v70, 1, v70")
        for q in range(4):
            e(f"v_cmp_eq_u32 vcc, {q}, v70")
            e("s_nop 1")
            e(f"v_cndmask_b32 v{BZ+q}, 0, v71, vcc")
        e(f"v_add_u32 v70, -16, v{ereg}")
        e("v_and_b32 v71, 1, v70")
        e("v_lshlrev_b32 v71, 4, v71")
        e("v_lshlrev_b32 v71, v71, v69")
        e("v_ashrrev_i32 v70, 1, v70")
        e("v_or_b32 v70, v70, v4")
        e("v_cmp_eq_u32 vcc, 0, v70")
        e("s_nop 1")
        e(f"v_cndmask_b32 v{BY+1}, 0, v71, vcc")
        e(f"v_mov_b32 v{BY+2}, 0")
        e(f"v_mov_b32 v{BY+3}, 0")
    e("s_waitcnt vmcnt(0)")
    for q in range(4):
        e(f"v_lshl_or_b32 v{BX+q}, v{113+2*q}, 16, v{112+2*q}")
    e(f"v_lshl_or_b32 v{BY0}, v121, 16, v120")
    e(f"v_mov_b32 v{BY1}, v{BY0}")
    e("v_cmp_eq_u32 vcc, 0, v4")
    e(f"v_mov_b32 v{YK+1}, v{YQ+1}")
    e("s_nop 0")
    e(f"v_cndmask_b32 v{YQ}, 0, v{YQ}, vcc")
    e(f"v_cndmask_b32 v{YQ+1}, 0, v{YQ+1}, vcc")
    e(f"v_cndmask_b32 v{YK}, 0, v{YK}, vcc")
    e(f"v_cndmask_b32 v{YK+1}, 0, v{YK+1}, vcc")
    for r in (YQ+2, YQ+3, YK+2, YK+3): e(f"v_mov_b32 v{r}, 0")
    e("s_nop 1")
    T0, T1 = 72, 88
    mf = lambda d, A, B, c: e(f"v_mfma_f32_32x32x16_bf16 v[{d}:{d+15}], v[{A}:{A+3}], v[{B}:{B+3}], {c}")
    mf(T0, XQ, BX, "0"); mf(T1, XK, BX, "0")
    mf(T0, YQ, BY0, f"v[{T0}:{T0+15}]"); mf(T1, YK, BY1, f"v[{T1}:{T1+15}]")
    mf(T0, ZV, BZ0, f"v[{T0}:{T0+15}]"); mf(T1, ZV, BZ1, f"v[{T1}:{T1+15}]")
    e(f"s_mul_i32 s54, s52, {WPF_HEAD}")
    e("s_lshl_b32 s55, s53, 12")
    e("s_add_u32 s54, s54, s55")
    e("s_nop 15")
    for tile, T in ((0, T0), (1, T1)):
        for aa in range(2):
            O = 124 + (tile*2+aa)*4
            for q in range(4):
                e(f"v_cvt_pk_bf16_f32 v{O+q}, v{T+8*aa+2*q}, v{T+8*aa+2*q+1}")
            e(f"buffer_store_dwordx4 v[{O}:{O+3}], v2, s[44:47], s54 offen offset:{(aa*2+tile)*1024}{SC}")

def p0_wo(a, C, sT, lab):
    e = a.e
    sdiv(a, "s52", f"s{sT}", 6)
    e("s_mul_i32 s53, s52, 6")
    e(f"s_sub_u32 s53, s{sT}, s53")
    srd(a, 36, sWO, 576*576*2)
    srd_ws(a, 40, WS_WOF, WOF_BYTES)
    e("s_getpc_b64 s[44:45]")
    a.label(f"{lab}_pc")
    e(f"s_add_u32 s44, s44, otab-{lab}_pc")
    e("s_addc_u32 s45, s45, 0")
    e("v_lshrrev_b32 v4, 4, v1")
    e("v_and_b32 v5, 15, v1")
    e("v_lshlrev_b32 v6, 4, v4")
    e("s_mul_i32 s54, s53, 192")
    e("v_add_u32 v6, s54, v6")
    for k3 in range(3):
        e(f"global_load_dwordx4 v[{16+4*k3}:{19+4*k3}], v6, s[44:45] offset:{k3*64}")
    e("s_lshl_b32 s54, s52, 5")
    e("v_lshlrev_b32 v5, 1, v5")
    e("v_add_u32 v5, s54, v5")
    e("s_movk_i32 s55, 1152")
    e("s_waitcnt vmcnt(0)")
    for k3 in range(3):
        for j in range(8):
            T = 16+4*k3+j//2
            A_ = 32 + k3*8 + j
            if j%2 == 0: e(f"v_and_b32 v{A_}, 0xffff, v{T}")
            else: e(f"v_lshrrev_b32 v{A_}, 16, v{T}")
            e(f"v_mad_u32_u24 v{A_}, v{A_}, s55, v5")
            e(f"buffer_load_ushort v{72+8*k3+j}, v{A_}, s[36:39], 0 offen")
    e("s_mul_i32 s54, s52, 18")
    e("s_mul_i32 s55, s53, 3")
    e("s_add_u32 s54, s54, s55")
    e("s_lshl_b32 s54, s54, 10")
    e("s_waitcnt vmcnt(0)")
    for k3 in range(3):
        for q in range(4):
            e(f"v_lshl_or_b32 v{56+4*k3+q}, v{72+8*k3+2*q+1}, 16, v{72+8*k3+2*q}")
        e(f"buffer_store_dwordx4 v[{56+4*k3}:{59+4*k3}], v2, s[40:43], s54 offen offset:{k3*1024}{SC}")

def phase0(a, C):
    e = a.e
    e(f"s_cmp_eq_u32 s{sWAVE}, 0")
    e("s_cbranch_scc0 p0_n0")
    p0_ln(a, C)
    e("s_branch p0_done")
    a.label("p0_n0")
    e(f"s_cmp_ge_u32 s{sWAVE}, 3")
    e("s_cbranch_scc1 p0_n2")
    e(f"s_sub_u32 s56, s{sWAVE}, 1")
    e("s_lshl_b32 s56, s56, 8")
    e("s_add_u32 s56, s56, s2")
    e("s_branch p0_fold")
    a.label("p0_n2")
    e(f"s_cmp_eq_u32 s{sWAVE}, 3")
    e("s_cbranch_scc0 p0_n3")
    e("s_add_u32 s56, s2, 512")
    e("s_cmp_lt_u32 s2, 64")
    e("s_cbranch_scc1 p0_fold")
    e("s_sub_u32 s56, s2, 64")
    e("s_branch p0_wo")
    a.label("p0_n3")
    e(f"s_cmp_eq_u32 s{sWAVE}, 4")
    e("s_cbranch_scc0 p0_n4")
    e("s_add_u32 s56, s2, 192")
    e("s_cmp_lt_u32 s2, 24")
    e("s_cbranch_scc1 p0_wo")
    e("s_sub_u32 s56, s2, 24")
    e("s_branch p0_pack")
    a.label("p0_n4")
    e(f"s_sub_u32 s56, s{sWAVE}, 5")
    e("s_lshl_b32 s56, s56, 8")
    e("s_add_u32 s56, s56, s2")
    e("s_add_u32 s56, s56, 232")
    a.label("p0_pack")
    pack_task(a, "pk0", 56)
    e("s_branch p0_done")
    a.label("p0_fold")
    p0_fold(a, C, 56)
    e("s_branch p0_done")
    a.label("p0_wo")
    p0_wo(a, C, 56, "p0wo")
    a.label("p0_done")

K1_PK, K1_V = 73728, 92160
def phase1(a, C):
    e = a.e
    B, D0, D1, A0, T = 16, 160, 176, 192, 208
    e("s_and_b32 s53, s2, 7")
    e("s_lshr_b32 s54, s2, 3")
    e("s_and_b32 s51, s53, 3")
    e("s_lshl_b32 s51, s51, 1")
    e("s_and_b32 s55, s54, 1")
    e("s_add_u32 s51, s51, s55")
    e("s_lshr_b32 s52, s53, 2")
    e("s_lshl_b32 s52, s52, 4")
    e("s_lshr_b32 s55, s54, 1")
    e("s_add_u32 s52, s52, s55")
    e(f"s_mul_i32 s53, s52, {WPF_HEAD}")
    e(f"s_add_u32 s53, s53, {WS_WPF}")
    srd_ws(a, 36, "s53", WPF_HEAD)
    srd_ws(a, 40, WS_XNF, XNF_BYTES)
    e(f"s_mul_i32 s54, s{sWAVE}, 9216")
    for i in range(9):
        if i % 4 == 0:
            e(f"s_add_u32 s55, s54, {i*1024}")
            e("s_mov_b32 m0, s55")
            e("s_nop 0")
        e(f"buffer_load_dwordx4 v2, s[36:39], s55 offen offset:{(i%4)*1024} lds")
    e("s_barrier")
    RB = 12
    e("s_lshl_b32 s56, s51, 3")
    e(f"s_add_u32 s56, s56, s{sWAVE}")
    e("s_mul_i32 s57, s56, 36864")
    st = {"blk": 0}
    def bload(s):
        while st["blk"] < s//4:
            e("s_add_u32 s57, s57, 4096"); st["blk"] += 1
        r = B + 4*(s % RB)
        e(f"buffer_load_dwordx4 v[{r}:{r+3}], v2, s[40:43], s57 offen offset:{(s%4)*1024}")
    for s in range(RB): bload(s)
    srd_ws(a, 44, WS_PHIQ, PHIQ_BYTES)
    e(f"s_mul_i32 s53, s52, {KV_HEAD}")
    e(f"s_add_u32 s53, s53, {WS_KV}")
    srd_ws(a, 48, "s53", KV_HEAD)
    e(f"s_mov_b32 s58, {hex(f2u(LOG2E))}")
    e("v_add_u32 v14, 0x10000, v2")
    e(f"s_waitcnt vmcnt({RB})")
    e("s_barrier")
    def aread(s):
        r = A0 + (s%2)*8
        va, off = (2, s*2048) if s < 32 else (14, s*2048-65536)
        e(f"ds_read_b128 v[{r}:{r+3}], v{va} offset:{off}")
        e(f"ds_read_b128 v[{r+4}:{r+7}], v{va} offset:{off+1024}")
    aread(0)
    for s in range(36):
        vm = min(RB-1, 35-s)
        if s < 35:
            aread(s+1)
            e(f"s_waitcnt vmcnt({vm}) lgkmcnt(2)")
        else:
            e("s_waitcnt vmcnt(0) lgkmcnt(0)")
        r = A0 + (s%2)*8
        rb = B + 4*(s % RB)
        c0 = "0" if s == 0 else f"v[{D0}:{D0+15}]"
        c1 = "0" if s == 0 else f"v[{D1}:{D1+15}]"
        e(f"v_mfma_f32_32x32x16_bf16 v[{D0}:{D0+15}], v[{r}:{r+3}], v[{rb}:{rb+3}], {c0}")
        e(f"v_mfma_f32_32x32x16_bf16 v[{D1}:{D1+15}], v[{r+4}:{r+7}], v[{rb}:{rb+3}], {c1}")
        if s + RB < 36: bload(s + RB)
    e("s_nop 15")
    OQ, OK_ = 16, 28
    softmax9(e, D0, OQ, T, 58)
    e("s_lshl_b32 s54, s56, 5")
    e("s_add_u32 s54, s54, s52")
    e(f"s_mul_i32 s54, s54, {PHIQ_BLK}")
    e(f"buffer_store_dwordx4 v[{OQ}:{OQ+3}], v2, s[44:47], s54 offen{SC}")
    e(f"buffer_store_dwordx4 v[{OQ+4}:{OQ+7}], v2, s[44:47], s54 offen offset:1024{SC}")
    e(f"buffer_store_dword v{OQ+8}, v3, s[44:47], s54 offen offset:2048{SC}")
    softmax9(e, D1, OK_, T, 58)
    e("v_and_b32 v5, 31, v1")
    e("v_lshrrev_b32 v6, 5, v1")
    e(f"s_lshl_b32 s54, s{sWAVE}, 5")
    e("v_add_u32 v7, s54, v5")
    e("v_mul_u32_u24 v8, 72, v7")
    e("v_mad_u32_u24 v8, v6, 36, v8")
    e(f"v_add_u32 v8, {K1_PK}, v8")
    for q in range(4):
        e(f"ds_write2_b32 v8, v{OK_+2*q}, v{OK_+2*q+1} offset0:{2*q} offset1:{2*q+1}")
    e(f"ds_write_b32 v8, v{OK_+8} offset:32")
    OV = 40
    vv = [D0+9+i for i in range(7)] + [D1+9, D1+10]
    e("v_cmp_eq_u32 vcc, 0, v6")
    e("v_mov_b32 v9, 1.0")
    e("s_nop 0")
    e("v_cndmask_b32 v9, 0, v9, vcc")
    for q in range(4):
        e(f"v_cvt_pk_bf16_f32 v{OV+q}, v{vv[2*q]}, v{vv[2*q+1]}")
    e(f"v_cvt_pk_bf16_f32 v{OV+4}, v{vv[8]}, v9")
    e("v_mul_u32_u24 v8, 40, v7")
    e("v_mad_u32_u24 v8, v6, 20, v8")
    e(f"v_add_u32 v8, {K1_V}, v8")
    for q in range(2):
        e(f"ds_write2_b32 v8, v{OV+2*q}, v{OV+2*q+1} offset0:{2*q} offset1:{2*q+1}")
    e(f"ds_write_b32 v8, v{OV+4} offset:16")
    e("s_waitcnt lgkmcnt(0)")
    e("s_barrier")
    e(f"s_cmp_ge_u32 s{sWAVE}, 2")
    e("s_cbranch_scc1 p1_kvend")
    e("v_bfe_u32 v10, v1, 2, 2")
    e("v_lshrrev_b32 v11, 5, v1")
    e("v_lshl_add_u32 v10, v11, 3, v10")
    e("v_bfe_u32 v11, v1, 4, 1")
    e("v_and_b32 v12, 3, v1")
    e("v_lshl_add_u32 v11, v11, 2, v12")
    e("v_lshlrev_b32 v11, 3, v11")
    e("v_mad_u32_u24 v12, v10, 40, v11")
    e(f"v_add_u32 v12, {K1_V}, v12")
    e("v_mul_u32_u24 v13, 72, v10")
    e("v_add_u32 v13, v13, v11")
    e(f"s_lshl_b32 s54, s{sWAVE}, 6")
    e(f"s_add_u32 s54, s54, {K1_PK}")
    e("v_add_u32 v13, s54, v13")
    AV, BP, KD = 48, 112, 176
    for st_ in range(16):
        for wh in range(2):
            e(f"ds_read_b64_tr_b16 v[{AV+4*st_+2*wh}:{AV+4*st_+2*wh+1}], v12 offset:{(16*st_+4*wh)*40}")
            e(f"ds_read_b64_tr_b16 v[{BP+4*st_+2*wh}:{BP+4*st_+2*wh+1}], v13 offset:{(16*st_+4*wh)*72}")
        if st_ >= 3:
            sp = st_ - 3
            e("s_waitcnt lgkmcnt(12)")
            c = "0" if sp == 0 else f"v[{KD}:{KD+15}]"
            e(f"v_mfma_f32_32x32x16_bf16 v[{KD}:{KD+15}], v[{AV+4*sp}:{AV+4*sp+3}], v[{BP+4*sp}:{BP+4*sp+3}], {c}")
    for sp in range(13, 16):
        e(f"s_waitcnt lgkmcnt({(15-sp)*4})")
        e(f"v_mfma_f32_32x32x16_bf16 v[{KD}:{KD+15}], v[{AV+4*sp}:{AV+4*sp+3}], v[{BP+4*sp}:{BP+4*sp+3}], v[{KD}:{KD+15}]")
    e("v_and_b32 v5, 31, v1")
    e("v_lshrrev_b32 v6, 5, v1")
    e("v_mul_u32_u24 v6, 576, v6")
    e("v_lshl_add_u32 v6, v5, 2, v6")
    e(f"s_lshl_b32 s54, s{sWAVE}, 7")
    e("v_add_u32 v6, s54, v6")
    e("v_mov_b32 v7, 0x40000000")
    e(f"s_cmp_eq_u32 s{sWAVE}, 0")
    e("s_cselect_b32 s55, 32, 4")
    e("v_cmp_gt_u32 vcc, s55, v5")
    e("s_nop 1")
    e("v_cndmask_b32 v6, v7, v6, vcc")
    e("v_cmp_gt_u32 vcc, 32, v1")
    e("s_nop 1")
    e("v_cndmask_b32 v8, v7, v6, vcc")
    e("s_nop 7")
    for r in range(12):
        off = ((r//4)*8 + r%4)*144
        e(f"buffer_atomic_add_f32 v{KD+r}, v{6 if r < 8 else 8}, s[48:51], 0 offen offset:{off}")
    a.label("p1_kvend")

K2_O = 98304
P2_PQ, P2_WO, P2_WO2, P2_T = 16, 64, 136, 208
def phase2_pre(a, C):
    e = a.e
    e("s_and_b32 s53, s2, 7")
    e("s_lshr_b32 s51, s2, 3")
    e("s_lshr_b32 s52, s51, 2")
    e("s_lshl_b32 s53, s53, 3")
    e("s_add_u32 s52, s52, s53")
    e("s_and_b32 s51, s51, 3")
    srd_ws(a, 44, WS_WOF, WOF_BYTES)
    e("s_mul_i32 s59, s51, 9")
    e(f"s_add_u32 s54, s59, s{sWAVE}")
    e("s_mul_i32 s54, s54, 18432")
    for ks in range(18):
        if ks and ks % 4 == 0: e("s_add_u32 s54, s54, 4096")
        e(f"buffer_load_dwordx4 v[{P2_WO+4*ks}:{P2_WO+4*ks+3}], v2, s[44:47], s54 offen offset:{(ks%4)*1024}")
    e(f"s_cmp_ge_u32 s{sWAVE}, 1")
    e("s_cbranch_scc1 p2_nowo2")
    e("s_add_u32 s54, s59, 8")
    e("s_mul_i32 s54, s54, 18432")
    for ks in range(18):
        if ks and ks % 4 == 0: e("s_add_u32 s54, s54, 4096")
        e(f"buffer_load_dwordx4 v[{P2_WO2+4*ks}:{P2_WO2+4*ks+3}], v2, s[44:47], s54 offen offset:{(ks%4)*1024}")
    a.label("p2_nowo2")

def phase2(a, C):
    e = a.e
    PQ, WO, WO2, T = P2_PQ, P2_WO, P2_WO2, P2_T
    srd_ws(a, 36, WS_KV, KV_BYTES)
    srd_ws(a, 40, WS_PHIQ, PHIQ_BYTES)
    e(f"s_mul_i32 s54, s{sWAVE}, {4*KV_HEAD}")
    e(f"s_mul_i32 s56, s{sWAVE}, 12288")
    e("s_sub_u32 s57, s56, s54")
    for k in range(12):
        if k % 4 == 0:
            e(f"s_add_u32 s55, s54, {k*1024}")
            e("s_add_u32 s58, s55, s57")
            e("s_mov_b32 m0, s58")
            e("s_nop 0")
        e(f"buffer_load_dwordx4 v2, s[36:39], s55 offen offset:{(k%4)*1024} lds")
    e("s_lshl_b32 s54, s52, 5")
    e(f"s_lshl_b32 s55, s{sWAVE}, 2")
    e("s_add_u32 s54, s54, s55")
    e(f"s_mul_i32 s54, s54, {PHIQ_BLK}")
    for i in range(4):
        r = PQ + 12*i
        e(f"buffer_load_dwordx4 v[{r}:{r+3}], v2, s[40:43], s54 offen")
        e(f"buffer_load_dwordx4 v[{r+4}:{r+7}], v2, s[40:43], s54 offen offset:1024")
        e(f"buffer_load_dword v{r+8}, v3, s[40:43], s54 offen offset:2048")
        for z in (9, 10, 11): e(f"v_mov_b32 v{r+z}, 0")
        if i < 3: e(f"s_add_u32 s54, s54, {PHIQ_BLK}")
    e("v_and_b32 v5, 31, v1")
    e("v_lshrrev_b32 v6, 5, v1")
    e("v_bfe_u32 v7, v5, 2, 1")
    e("v_lshrrev_b32 v8, 3, v5")
    e("v_and_b32 v9, 3, v5")
    e("v_lshl_add_u32 v8, v8, 2, v9")
    e("v_mad_u32_u24 v9, v7, 10, v8")
    e("v_mov_b32 v10, 9")
    e("v_cmp_eq_u32 vcc, 9, v8")
    e("s_nop 1")
    e("v_cndmask_b32 v9, v9, v10, vcc")
    e("v_mov_b32 v10, 19")
    e("v_cmp_lt_u32 vcc, 9, v8")
    e("s_nop 1")
    e("v_cndmask_b32 v9, v9, v10, vcc")
    e("v_mul_u32_u24 v9, 144, v9")
    e("v_mad_u32_u24 v9, v6, 64, v9")
    e("v_lshl_add_u32 v9, v6, 3, v9")
    e("v_add_u32 v9, s56, v9")
    F = T; AF = T + 18; DD = AF + 12
    for z in (9, 10, 11): e(f"v_mov_b32 v{AF+z}, 0")
    e("s_waitcnt vmcnt(12)")
    for i in range(4):
        for q in range(9):
            e(f"ds_read_b64 v[{F+2*q}:{F+2*q+1}], v9 offset:{i*KV_HEAD + q*8}")
        e("s_waitcnt lgkmcnt(0)")
        for q in range(9):
            e(f"v_cvt_pk_bf16_f32 v{AF+q}, v{F+2*q}, v{F+2*q+1}")
        e(f"s_waitcnt vmcnt({(3-i)*3})")
        e("s_nop 1")
        r = PQ + 12*i
        e(f"v_mfma_f32_32x32x16_bf16 v[{DD}:{DD+15}], v[{AF}:{AF+3}], v[{r}:{r+3}], 0")
        e(f"v_mfma_f32_32x32x16_bf16 v[{DD}:{DD+15}], v[{AF+4}:{AF+7}], v[{r+4}:{r+7}], v[{DD}:{DD+15}]")
        e(f"v_mfma_f32_32x32x16_bf16 v[{DD}:{DD+15}], v[{AF+8}:{AF+11}], v[{r+8}:{r+11}], v[{DD}:{DD+15}]")
        e("s_nop 15")
        e(f"v_add_f32 v{F}, {hex(f2u(1e-6))}, v{DD+9}")
        e(f"v_rcp_f32 v{F}, v{F}")
        e("s_nop 0")
        for q in range(9):
            e(f"v_mul_f32 v{r+q}, v{DD+q}, v{F}")
    for p in range(2):
        for i in range(9):
            e(f"v_cvt_pk_bf16_f32 v{T+9*p+i}, v{PQ+12*(2*p)+i}, v{PQ+12*(2*p+1)+i}")
    e("v_bfe_u32 v7, v5, 1, 3")
    e("v_mul_u32_u24 v8, 1152, v5")
    e(f"v_add_u32 v8, {K2_O}, v8")
    e(f"s_mul_i32 s54, s{sWAVE}, 9")
    e("v_lshlrev_b32 v9, 2, v6")
    e("v_add_u32 v9, s54, v9")
    for q4 in range(4):
        e(f"v_add_u32 v10, {q4}, v9")
        e("v_xor_b32 v10, v10, v7")
        e("v_lshl_add_u32 v10, v10, 4, v8")
        e(f"ds_write_b128 v10, v[{T+4*q4}:{T+4*q4+3}]")
    e("s_add_u32 s54, s54, 8")
    e("v_xor_b32 v10, s54, v7")
    e("v_lshl_add_u32 v10, v10, 4, v8")
    e("v_lshl_add_u32 v10, v6, 3, v10")
    e(f"ds_write_b64 v10, v[{T+16}:{T+17}]")
    srd(a, 36, sX, S*D*2)
    e("s_mul_i32 s56, s52, 36864")
    e("s_mul_i32 s55, s51, 288")
    e("s_add_u32 s56, s56, s55")
    XR = (16, 20)
    VO = (12, 13); LA = (14, 15)
    for rnd in range(2):
        if rnd == 1: e("v_add_u32 v10, 512, v0")
        else: e("v_mov_b32 v10, v0")
        e("v_mul_u32_u24 v11, 3641, v10")
        e("v_lshrrev_b32 v11, 16, v11")
        e("v_mul_u32_u24 v4, 18, v11")
        e("v_sub_u32 v4, v10, v4")
        e(f"v_mul_u32_u24 v{VO[rnd]}, 1152, v11")
        e(f"v_lshl_add_u32 v{VO[rnd]}, v4, 4, v{VO[rnd]}")
        e(f"v_mul_u32_u24 v{LA[rnd]}, 592, v11")
        e(f"v_lshl_add_u32 v{LA[rnd]}, v4, 5, v{LA[rnd]}")
    e(f"buffer_load_dwordx4 v[{XR[0]}:{XR[0]+3}], v{VO[0]}, s[36:39], s56 offen")
    e(f"s_cmp_ge_u32 s{sWAVE}, 1")
    e("s_cbranch_scc1 p2_nox2")
    e(f"buffer_load_dwordx4 v[{XR[1]}:{XR[1]+3}], v{VO[1]}, s[36:39], s56 offen")
    a.label("p2_nox2")
    e("s_waitcnt lgkmcnt(0)")
    e("s_barrier")
    e("v_and_b32 v5, 15, v1")
    e("v_lshrrev_b32 v6, 4, v1")
    e("v_lshrrev_b32 v7, 1, v5")
    e("v_mul_u32_u24 v8, 1152, v5")
    e(f"v_add_u32 v8, {K2_O}, v8")
    e("v_xor_b32 v9, v6, v7")
    e("v_lshl_add_u32 v10, v9, 4, v8")
    e("v_xor_b32 v9, 4, v9")
    e("v_lshl_add_u32 v11, v9, 4, v8")
    BB = T; AC = T + 16
    def bread(ks):
        for tt in range(2):
            r = BB + (ks%2)*8 + tt*4
            e(f"ds_read_b128 v[{r}:{r+3}], v{10 if ks%2==0 else 11} offset:{tt*18432 + (ks//2)*128}")
    for cls in (0, 1):
        if cls == 0:
            e(f"s_cmp_ge_u32 s{sWAVE}, 1")
            e("s_cbranch_scc1 p2_g1")
        else:
            a.label("p2_g1")
        bread(0)
        for ks in range(18):
            if ks < 17:
                bread(ks+1); e("s_waitcnt lgkmcnt(2)")
            else:
                e("s_waitcnt lgkmcnt(0)")
            for tt in range(2):
                c = "0" if ks == 0 else f"v[{AC+4*tt}:{AC+4*tt+3}]"
                r = BB + (ks%2)*8 + tt*4
                e(f"v_mfma_f32_16x16x32_bf16 v[{AC+4*tt}:{AC+4*tt+3}], v[{WO+4*ks}:{WO+4*ks+3}], v[{r}:{r+3}], {c}")
            if cls == 0:
                for tt in range(2):
                    c = "0" if ks == 0 else f"v[{AC+8+4*tt}:{AC+8+4*tt+3}]"
                    r = BB + (ks%2)*8 + tt*4
                    e(f"v_mfma_f32_16x16x32_bf16 v[{AC+8+4*tt}:{AC+8+4*tt+3}], v[{WO2+4*ks}:{WO2+4*ks+3}], v[{r}:{r+3}], {c}")
        if cls == 0:
            e("s_branch p2_g2")
    a.label("p2_g2")
    e("v_mul_u32_u24 v8, 592, v5")
    e("v_lshl_add_u32 v8, v6, 4, v8")
    e(f"s_lshl_b32 s54, s{sWAVE}, 6")
    e("v_add_u32 v9, s54, v8")
    e("s_nop 7")
    e(f"ds_write_b128 v9, v[{AC}:{AC+3}]")
    e(f"ds_write_b128 v9, v[{AC+4}:{AC+7}] offset:{16*592}")
    e(f"s_cmp_ge_u32 s{sWAVE}, 1")
    e("s_cbranch_scc1 p2_e1")
    e(f"ds_write_b128 v8, v[{AC+8}:{AC+11}] offset:512")
    e(f"ds_write_b128 v8, v[{AC+12}:{AC+15}] offset:{16*592+512}")
    a.label("p2_e1")
    e("s_waitcnt vmcnt(0) lgkmcnt(0)")
    e("s_barrier")
    srd_ws(a, 40, WS_H, WS_H_BYTES)
    for rnd in range(2):
        if rnd == 1:
            e(f"s_cmp_ge_u32 s{sWAVE}, 1")
            e("s_cbranch_scc1 p2_fin")
        e(f"ds_read_b128 v[24:27], v{LA[rnd]}")
        e(f"ds_read_b128 v[28:31], v{LA[rnd]} offset:16")
        X = XR[rnd]
        for q in range(4):
            e(f"v_lshlrev_b32 v{32+2*q}, 16, v{X+q}")
            e(f"v_and_b32 v{33+2*q}, 0xffff0000, v{X+q}")
        e("s_waitcnt lgkmcnt(0)")
        for q in range(8):
            e(f"v_add_f32 v{24+q}, v{24+q}, v{32+q}")
        for q in range(4):
            e(f"v_cvt_pk_bf16_f32 v{40+4*rnd+q}, v{24+2*q}, v{25+2*q}")
        e(f"buffer_store_dwordx4 v[{40+4*rnd}:{43+4*rnd}], v{VO[rnd]}, s[40:43], s56 offen{SC}")
    a.label("p2_fin")

P3_R = 16
P3_B0, P3_RING = 16, 48
P3_ACC = P3_RING + 4*P3_R
P3_TMP = P3_ACC + 80
LDS_CNT = 2*P_BLK
class P3State: pass
def phase3_pre(a, C):
    e = a.e
    st = P3State(); C.p3 = st
    st.soff_base = 0
    e("s_and_b32 s53, s2, 7")
    e("s_lshr_b32 s54, s2, 3")
    e("s_and_b32 s50, s53, 3")
    e("s_lshl_b32 s50, s50, 1")
    e("s_and_b32 s55, s54, 1")
    e("s_add_u32 s50, s50, s55")
    e("s_lshr_b32 s51, s53, 2")
    e("s_lshl_b32 s51, s51, 4")
    e("s_lshr_b32 s55, s54, 1")
    e("s_add_u32 s51, s51, s55")
    e(f"s_mul_i32 s53, s50, {SPLIT_BYTES}")
    e(f"s_add_u32 s53, s53, {WS_W}")
    srd_ws(a, 36, "s53", SPLIT_BYTES)
    e(f"s_mul_i32 s53, s{sWAVE}, 252")
    e(f"s_mul_i32 s54, s{sWAVE}, 234")
    e(f"s_add_u32 s54, s54, 72")
    e(f"s_cmp_lt_u32 s{sWAVE}, 4")
    e(f"s_cselect_b32 s53, s53, s54")
    e(f"s_lshl_b32 s52, s53, 10")
    for n in range(P3_R): p3_issue(a, C, n)

def p3_issue(a, C, n):
    st = C.p3
    while st.soff_base < n // 4:
        a.e("s_add_u32 s52, s52, 4096"); st.soff_base += 1
    r = P3_RING + 4*(n % P3_R)
    a.e(f"buffer_load_dwordx4 v[{r}:{r+3}], v2, s[36:39], s52 offen offset:{(n%4)*1024}")

def lds_wait(a, voff_reg, target, lab):
    e = a.e
    a.label(lab)
    e(f"ds_read_b32 v15, v{voff_reg}")
    e("s_waitcnt lgkmcnt(0)")
    e("v_readfirstlane_b32 s58, v15")
    e(f"s_cmp_ge_u32 s58, {target}")
    e(f"s_cbranch_scc1 {lab}_ok")
    e(f"s_cmp_eq_u32 s{sSPIN}, 0")
    e(f"s_cbranch_scc1 {lab}_ok")
    e(f"s_sub_u32 s{sSPIN}, s{sSPIN}, 1")
    e("s_sleep 1")
    e(f"s_branch {lab}")
    a.label(f"{lab}_ok")

def phase3(a, C):
    e = a.e
    R, B0, RING, ACC, TMP = P3_R, P3_B0, P3_RING, P3_ACC, P3_TMP
    vAe, vAo, vAe2, vAo2, vWA, vWB, vWC, vC0, vCA, vCB = 4, 5, 6, 7, 8, 9, 10, 11, 12, 13
    sC1 = 57
    e(f"s_mul_i32 s53, s51, {P_BLK}")
    e(f"s_add_u32 s53, s53, {WS_H}")
    srd_ws(a, 40, "s53", P_BLK)
    e(f"s_lshl_b32 s54, s50, 5")
    e(f"s_add_u32 s54, s54, s51")
    e(f"s_mul_i32 s53, s54, {P_BLK}")
    e(f"s_add_u32 s53, s53, {WS_P}")
    srd_ws(a, 44, "s53", P_BLK)
    X = ACC
    e("v_lshrrev_b32 v12, 3, v0")
    e("v_and_b32 v13, 7, v0")
    e("v_mul_u32_u24 v14, 1152, v12")
    e("v_lshl_add_u32 v15, v13, 4, v14")
    for i in range(9):
        e(f"buffer_load_dwordx4 v[{X+4*i}:{X+4*i+3}], v15, s[40:43], 0 offen offset:{i*128}")
    e("v_bfe_u32 v4, v12, 1, 3")
    e("v_xor_b32 v4, v4, v13")
    e(f"v_lshl_add_u32 v{TMP+20}, v4, 4, v14")
    e(f"v_mov_b32 v{vCA}, {LDS_CNT}")
    e(f"v_mov_b32 v{vCB}, {LDS_CNT+4}")
    e("v_mov_b32 v14, 0")
    e(f"ds_write_b32 v{vCA}, v14")
    e(f"ds_write_b32 v{vCB}, v14")
    e("v_and_b32 v14, 15, v1")
    e("v_lshrrev_b32 v15, 4, v1")
    e(f"v_lshrrev_b32 v{TMP}, 1, v14")
    e(f"v_mul_u32_u24 v{TMP+1}, 1152, v14")
    e(f"v_xor_b32 v14, v15, v{TMP}")
    e(f"v_lshl_add_u32 v{vAe}, v14, 4, v{TMP+1}")
    e("v_xor_b32 v14, 4, v14")
    e(f"v_lshl_add_u32 v{vAo}, v14, 4, v{TMP+1}")
    e(f"v_add_u32 v{vAe2}, {P_BLK}, v{vAe}")
    e(f"v_add_u32 v{vAo2}, {P_BLK}, v{vAo}")
    e(f"s_mul_i32 s53, s{sWAVE}, 9")
    e(f"v_add_u32 v{TMP+1}, {P_BLK}, v{TMP+1}")
    e(f"v_add_u32 v14, s53, v15")
    e(f"v_xor_b32 v14, v14, v{TMP}")
    e(f"v_lshl_add_u32 v{vWA}, v14, 4, v{TMP+1}")
    e(f"s_add_u32 s53, s53, 4")
    e(f"v_add_u32 v14, s53, v15")
    e(f"v_xor_b32 v14, v14, v{TMP}")
    e(f"v_lshl_add_u32 v{vWB}, v14, 4, v{TMP+1}")
    e(f"s_add_u32 s53, s53, 4")
    e(f"v_xor_b32 v14, s53, v{TMP}")
    e(f"v_lshl_add_u32 v14, v14, 4, v{TMP+1}")
    e(f"v_lshl_add_u32 v{vWC}, v15, 2, v14")
    e(f"v_mov_b32 v{vC0}, {hex(f2u(GC0))}")
    e(f"s_mov_b32 s{sC1}, {hex(f2u(GC1))}")
    e("s_waitcnt vmcnt(0)")
    stamp(a, C, 7)
    ln_rows(e, X, TMP)
    for i in range(9):
        e(f"ds_write_b128 v{TMP+20}, v[{X+4*i}:{X+4*i+3}] offset:{i*128}")
    e("s_waitcnt lgkmcnt(0)")
    e("s_barrier")
    stamp(a, C, 8)

    def bread(buf, ks, ve, vo):
        for tt in range(4):
            r = B0 + buf*16 + tt*4
            v = ve if ks % 2 == 0 else vo
            e(f"ds_read_b128 v[{r}:{r+3}], v{v} offset:{tt*18432 + (ks//2)*128}")

    def gemm_group(n0, nu, ve, vo, total, acc0=0, sync=None):
        if sync: sync(0)
        bread(0, 0, ve, vo)
        n = n0
        for ks in range(18):
            cur = ks % 2
            if ks < 17:
                if sync: sync(ks+1)
                bread(1-cur, ks+1, ve, vo)
                lg = 4
            else:
                lg = 0
            for u in range(nu):
                slot = n % R
                outstanding_after = min(total - 1 - n, R - 1)
                w = f"s_waitcnt vmcnt({outstanding_after})"
                if u == 0: w += f" lgkmcnt({lg})"
                e(w)
                ra = RING + 4*slot
                for tt in range(4):
                    acc = ACC + ((acc0+u)*4+tt)*4
                    rb_ = B0 + cur*16 + tt*4
                    c = "0" if ks == 0 else f"v[{acc}:{acc+3}]"
                    e(f"v_mfma_f32_16x16x32_bf16 v[{acc}:{acc+3}], v[{ra}:{ra+3}], v[{rb_}:{rb_+3}], {c}")
                if n + R < total:
                    p3_issue(a, C, n + R)
                n += 1
        return n

    def gelu(us, vaddr, width):
        for tt in range(4):
            els = [(u, r) for u in us for r in range(2)]
            nE = len(els)
            T1, T2 = TMP, TMP + 8
            Dw = TMP + 16 + (tt%2)*4
            G = lambda u, r: ACC + (u*4+tt)*4 + r
            Uu = lambda u, r: ACC + (u*4+tt)*4 + 2 + r
            for i, (u, r) in enumerate(els): e(f"v_mul_f32 v{T1+i}, v{G(u,r)}, v{G(u,r)}")
            for i, (u, r) in enumerate(els): e(f"v_fma_f32 v{T1+i}, v{T1+i}, s{sC1}, v{vC0}")
            for i, (u, r) in enumerate(els): e(f"v_mul_f32 v{T1+i}, v{T1+i}, v{G(u,r)}")
            for i, (u, r) in enumerate(els): e(f"v_exp_f32 v{T1+i}, v{T1+i}")
            for i, (u, r) in enumerate(els): e(f"v_mul_f32 v{T2+i}, v{G(u,r)}, v{Uu(u,r)}")
            for i, (u, r) in enumerate(els): e(f"v_add_f32 v{T1+i}, 1.0, v{T1+i}")
            for i, (u, r) in enumerate(els): e(f"v_rcp_f32 v{T1+i}, v{T1+i}")
            if nE < 4: e("s_nop 0")
            for i, (u, r) in enumerate(els): e(f"v_mul_f32 v{T2+i}, v{T2+i}, v{T1+i}")
            for k in range(nE//2): e(f"v_cvt_pk_bf16_f32 v{Dw+k}, v{T2+2*k}, v{T2+2*k+1}")
            if width == 4: e(f"ds_write_b128 v{vaddr}, v[{Dw}:{Dw+3}] offset:{tt*18432}")
            else: e(f"ds_write_b32 v{vaddr}, v{Dw} offset:{tt*18432}")

    BIG = 10**9
    n = gemm_group(0, 4, vAe, vAo, BIG)
    e("s_nop 7")
    gelu([0,1,2,3], vWA, 4)
    n = gemm_group(n, 5, vAe, vAo, BIG)
    e("s_nop 7")
    gelu([0,1,2,3], vWB, 4)
    gelu([4], vWC, 1)
    e("s_waitcnt lgkmcnt(0)")
    e(f"s_cmp_lt_u32 s{sWAVE}, 4")
    e(f"s_cselect_b32 s58, 0, 4")
    e(f"s_add_u32 s58, s58, {LDS_CNT}")
    e("v_mov_b32 v14, s58")
    e("v_mov_b32 v15, 1")
    e("s_mov_b64 exec, 1")
    e("ds_add_u32 v14, v15")
    e("s_mov_b64 exec, -1")
    stamp(a, C, 9)
    assert n == 162
    saved = st_save = C.p3.soff_base
    e(f"s_cmp_ge_u32 s{sWAVE}, 4")
    e("s_cbranch_scc1 p3_c1")
    for cls in (0, 1):
        if cls == 1:
            a.label("p3_c1")
            C.p3.soff_base = saved
        total = 252 if cls == 0 else 234
        def sync0(ks, cls=cls):
            if ks == 0: lds_wait(a, vCA, 4, f"p3_wa{cls}")
            if ks == 9: lds_wait(a, vCB, 4, f"p3_wb{cls}")
        n = gemm_group(162, 2, vAe2, vAo2, total, acc0=0, sync=sync0)
        e(f"s_lshl_b32 s53, s{sWAVE}, 13")
        e("s_nop 7")
        for tt in range(4):
            Dw = TMP + tt*4
            for r in range(4):
                e(f"v_cvt_pk_bf16_f32 v{Dw+r}, v{ACC+(0*4+tt)*4+r}, v{ACC+(1*4+tt)*4+r}")
            e(f"buffer_store_dwordx4 v[{Dw}:{Dw+3}], v2, s[44:47], s53 offen offset:{tt*1024}{SC}")
        nst0 = 4
        nt2 = 3 if cls == 0 else 2
        C.extra_vm = nst0
        def gemm_group2(n0, nu, total):
            bread(0, 0, vAe2, vAo2)
            n = n0
            for ks in range(18):
                cur = ks % 2
                if ks < 17:
                    bread(1-cur, ks+1, vAe2, vAo2); lg = 4
                else: lg = 0
                for u in range(nu):
                    slot = n % R
                    after = min(total - 1 - n, R - 1)
                    if n <= n0 + R - 1: after += nst0
                    w = f"s_waitcnt vmcnt({after})"
                    if u == 0: w += f" lgkmcnt({lg})"
                    e(w)
                    ra = RING + 4*slot
                    for tt in range(4):
                        acc = ACC + ((2+u)*4+tt)*4
                        rb_ = B0 + cur*16 + tt*4
                        c = "0" if ks == 0 else f"v[{acc}:{acc+3}]"
                        e(f"v_mfma_f32_16x16x32_bf16 v[{acc}:{acc+3}], v[{ra}:{ra+3}], v[{rb_}:{rb_+3}], {c}")
                    if n + R < total:
                        p3_issue(a, C, n + R)
                    n += 1
            return n
        n = gemm_group2(n, nt2, total)
        assert n == total
        e("s_nop 7")
        e(f"s_add_u32 s53, s53, 4096")
        for tt in range(4):
            Dw = TMP + 16 + (tt%2)*4 if False else TMP + tt*4
            for r in range(4):
                e(f"v_cvt_pk_bf16_f32 v{Dw+r}, v{ACC+(2*4+tt)*4+r}, v{ACC+(3*4+tt)*4+r}")
            e(f"buffer_store_dwordx4 v[{Dw}:{Dw+3}], v2, s[44:47], s53 offen offset:{tt*1024}{SC}")
        if cls == 0:
            e(f"s_lshl_b32 s53, s{sWAVE}, 11")
            e(f"s_add_u32 s53, s53, 65536")
            for tt in range(4):
                for rp in range(2):
                    Dw = TMP + 16 + tt*2 + rp
                    e(f"v_cvt_pk_bf16_f32 v{Dw}, v{ACC+(4*4+tt)*4+2*rp}, v{ACC+(4*4+tt)*4+2*rp+1}")
                    e(f"buffer_store_dword v{Dw}, v3, s[44:47], s53 offen offset:{(tt*2+rp)*256}{SC}")
            e("s_branch p3_end")
    a.label("p3_end")

def phase4(a, C):
    e = a.e
    srd_ws(a, 36, WS_P, WS_P_BYTES)
    srd_ws(a, 40, WS_H, WS_H_BYTES)
    srd(a, 44, sOUT, S*D*2)
    e(f"s_cmp_ge_u32 s{sWAVE}, 4")
    e("s_cbranch_scc1 p4_s")
    e(f"s_mul_i32 s53, s51, {P_BLK}")
    e("s_lshl_b32 s54, s50, 13")
    e("s_add_u32 s53, s53, s54")
    e(f"s_lshl_b32 s54, s{sWAVE}, 10")
    e("s_add_u32 s53, s53, s54")
    e("v_add_u32 v4, 4096, v2")
    for src in range(8):
        e(f"buffer_load_dwordx4 v[{16+8*src}:{19+8*src}], v2, s[36:39], s53 offen")
        e(f"buffer_load_dwordx4 v[{20+8*src}:{23+8*src}], v4, s[36:39], s53 offen")
        if src < 7: e(f"s_add_u32 s53, s53, {32*P_BLK}")
    e("v_and_b32 v5, 15, v1")
    e("v_lshrrev_b32 v6, 4, v1")
    e("v_mul_u32_u24 v7, 1152, v5")
    e("v_lshl_add_u32 v7, v6, 5, v7")
    e("s_lshl_b32 s54, s51, 6")
    e(f"s_lshl_b32 s55, s{sWAVE}, 4")
    e("s_add_u32 s54, s54, s55")
    e("s_mul_i32 s54, s54, 1152")
    e("s_lshl_b32 s55, s50, 7")
    e("s_add_u32 s54, s54, s55")
    e("buffer_load_dwordx4 v[80:83], v7, s[40:43], s54 offen")
    e("buffer_load_dwordx4 v[84:87], v7, s[40:43], s54 offen offset:16")
    e("s_waitcnt vmcnt(0)")
    for q in range(8):
        e(f"v_lshlrev_b32 v{88+2*q}, 16, v{80+q}")
        e(f"v_and_b32 v{89+2*q}, 0xffff0000, v{80+q}")
    for src in range(8):
        for p in range(2):
            for r in range(4):
                x = 16 + 8*src + 4*p + r
                e(f"v_lshlrev_b32 v{104+2*(r%2)}, 16, v{x}")
                e(f"v_and_b32 v{105+2*(r%2)}, 0xffff0000, v{x}")
                e(f"v_add_f32 v{88+4*r+2*p}, v{88+4*r+2*p}, v{104+2*(r%2)}")
                e(f"v_add_f32 v{89+4*r+2*p}, v{89+4*r+2*p}, v{105+2*(r%2)}")
    for q in range(8):
        e(f"v_cvt_pk_bf16_f32 v{16+q}, v{88+2*q}, v{89+2*q}")
    e("buffer_store_dwordx4 v[16:19], v7, s[44:47], s54 offen")
    e("buffer_store_dwordx4 v[20:23], v7, s[44:47], s54 offen offset:16")
    e("s_branch p4_end")
    a.label("p4_s")
    e(f"s_cmp_ge_u32 s{sWAVE}, 5")
    e("s_cbranch_scc1 p4_end")
    e(f"s_mul_i32 s53, s51, {P_BLK}")
    e("s_lshl_b32 s54, s50, 8")
    e("s_add_u32 s53, s53, s54")
    e("s_add_u32 s53, s53, 65536")
    e("v_add_u32 v4, 4096, v3")
    for src in range(8):
        for u in range(4):
            e(f"buffer_load_dword v{16+4*src+u}, v{3 if u < 2 else 4}, s[36:39], s53 offen offset:{(u%2)*2048}")
        if src < 7: e(f"s_add_u32 s53, s53, {32*P_BLK}")
    e("v_and_b32 v5, 15, v1")
    e("v_lshrrev_b32 v6, 4, v1")
    e("v_mul_u32_u24 v7, 1152, v5")
    e("v_lshl_add_u32 v7, v6, 5, v7")
    e("s_lshl_b32 s54, s51, 6")
    e("s_lshr_b32 s55, s50, 1")
    e("s_lshl_b32 s55, s55, 4")
    e("s_add_u32 s54, s54, s55")
    e("s_mul_i32 s54, s54, 1152")
    e("s_and_b32 s55, s50, 1")
    e("s_lshl_b32 s55, s55, 4")
    e("s_add_u32 s54, s54, s55")
    e("s_add_u32 s54, s54, 1024")
    e("buffer_load_dwordx4 v[80:83], v7, s[40:43], s54 offen")
    e("s_waitcnt vmcnt(0)")
    for q in range(4):
        e(f"v_lshlrev_b32 v{88+2*q}, 16, v{80+q}")
        e(f"v_and_b32 v{89+2*q}, 0xffff0000, v{80+q}")
    for src in range(8):
        for u in range(4):
            x = 16+4*src+u
            e(f"v_lshlrev_b32 v{104+2*(u%2)}, 16, v{x}")
            e(f"v_and_b32 v{105+2*(u%2)}, 0xffff0000, v{x}")
            e(f"v_add_f32 v{88+u}, v{88+u}, v{104+2*(u%2)}")
            e(f"v_add_f32 v{92+u}, v{92+u}, v{105+2*(u%2)}")
    for q in range(4):
        e(f"v_cvt_pk_bf16_f32 v{16+q}, v{88+2*q}, v{89+2*q}")
    e("buffer_store_dwordx4 v[16:19], v7, s[44:47], s54 offen")
    a.label("p4_end")

LDS_TOTAL = 2*P_BLK + 256
NAME = "sequential_preLN__linear_kernel_hedgehog__geglu_ffn__prompt_kernel"
def build(fname, ts=False, spin=2000000):
    C = Ctx(ts)
    a = Asm()
    a(HEADER.rstrip())
    a(f"; @launch grid=(256,1,1) block=(512,1,1) lds={LDS_TOTAL}")
    a('.amdgcn_target "amdgcn-amd-amdhsa--gfx950"')
    a(".text")
    kernel_begin(a, NAME)
    e = a.e
    e("s_cmp_ge_u32 s2, 256")
    e("s_cbranch_scc1 k_done")
    stamp(a, C, 0)
    e("s_load_dwordx8 s[4:11], s[0:1], 0")
    e("s_load_dwordx8 s[12:19], s[0:1], 32")
    e("s_load_dwordx4 s[20:23], s[0:1], 64")
    e("s_load_dwordx2 s[24:25], s[0:1], 80")
    e("v_lshrrev_b32 v4, 6, v0")
    e("v_and_b32 v1, 63, v0")
    e(f"v_readfirstlane_b32 s{sWAVE}, v4")
    e("v_lshlrev_b32 v2, 4, v1")
    e("v_lshlrev_b32 v3, 2, v1")
    e(f"s_mov_b32 s{sSPIN}, {spin}")
    e("s_waitcnt lgkmcnt(0)")
    e(f"s_add_u32 s30, s{sWS}, {hex(WS_TAG)}")
    e(f"s_addc_u32 s31, s{sWS+1}, 0")
    e(f"s_load_dword s{sTAG}, s[30:31], 0")
    phase0(a, C)
    e("s_waitcnt lgkmcnt(0)")
    e(f"s_mul_i32 s{sTAG}, s{sTAG}, 1664525")
    e(f"s_add_u32 s{sTAG}, s{sTAG}, 1013904223")
    stamp(a, C, 1)
    signal(a, 0, "b0_s")
    e(f"s_cmp_eq_u32 s{sWAVE}, 0")
    e("s_cbranch_scc1 b0_poll")
    e(f"s_sub_u32 s56, s{sWAVE}, 1")
    e("s_lshl_b32 s56, s56, 8")
    e("s_add_u32 s56, s56, s2")
    e("s_add_u32 s56, s56, 1000")
    e("s_cmp_ge_u32 s56, 2592")
    e("s_cbranch_scc1 b0_join")
    pack_task(a, "pk1", 56)
    e("s_branch b0_join")
    a.label("b0_poll")
    poll_all(a, 0, "b0_p")
    a.label("b0_join")
    e("s_barrier")
    stamp(a, C, 2)
    phase1(a, C)
    stamp(a, C, 3)
    signal(a, 1, "b1_s")
    phase2_pre(a, C)
    e(f"s_cmp_lg_u32 s{sWAVE}, 0")
    e("s_cbranch_scc1 b1_join")
    poll_all(a, 1, "b1_p")
    e("s_cmp_lg_u32 s2, 0")
    e("s_cbranch_scc1 b1_join")
    srd_ws(a, 32, WS_TAG, 4)
    e(f"v_mov_b32 v4, s{sTAG}")
    e("v_mov_b32 v5, 0")
    e("s_mov_b64 exec, 1")
    e(f"buffer_store_dword v4, v5, s[32:35], 0 offen{SC}")
    e("s_mov_b64 exec, -1")
    a.label("b1_join")
    e("s_barrier")
    stamp(a, C, 4)
    phase2(a, C)
    stamp(a, C, 5)
    signal(a, 2, "b2_s")
    phase3_pre(a, C)
    e(f"s_cmp_lg_u32 s{sWAVE}, 0")
    e("s_cbranch_scc1 b2_join")
    e("s_lshr_b32 s53, s51, 2")
    e("s_and_b32 s54, s51, 3")
    e("s_lshl_b32 s54, s54, 6")
    e("s_add_u32 s53, s53, s54")
    poll_list(a, 2, 53, 8, 8, "b2_p")
    a.label("b2_join")
    e("s_barrier")
    stamp(a, C, 6)
    phase3(a, C)
    stamp(a, C, 10)
    signal(a, 3, "b3_s")
    e(f"s_cmp_lg_u32 s{sWAVE}, 0")
    e("s_cbranch_scc1 b3_join")
    srd_ws(a, 32, WS_FL + 3*256*FL_STRIDE, 256*FL_STRIDE)
    e("s_lshr_b32 s53, s51, 4")
    e("s_lshl_b32 s53, s53, 2")
    e("s_and_b32 s54, s51, 15")
    e("s_lshl_b32 s54, s54, 4")
    e("s_add_u32 s53, s53, s54")
    e("s_lshl_b32 s53, s53, 7")
    e("v_lshrrev_b32 v4, 1, v1")
    e("v_and_b32 v5, 1, v1")
    e("v_lshl_add_u32 v4, v5, 3, v4")
    e("v_lshlrev_b32 v4, 7, v4")
    e("s_mov_b64 exec, 0xff")
    a.label("b3_p")
    e(f"buffer_load_dword v8, v4, s[32:35], s53 offen{SC}")
    e("s_waitcnt vmcnt(0)")
    e(f"v_cmp_ne_u32 vcc, s{sTAG}, v8")
    e(f"s_cmp_eq_u32 s{sSPIN}, 0")
    e(f"s_cbranch_scc1 b3_p_x")
    e(f"s_sub_u32 s{sSPIN}, s{sSPIN}, 1")
    e(f"s_cbranch_vccnz b3_p")
    a.label("b3_p_x")
    e("s_mov_b64 exec, -1")
    a.label("b3_join")
    e("s_barrier")
    stamp(a, C, 11)
    phase4(a, C)
    if ts:
        e("s_waitcnt vmcnt(0)")
        stamp(a, C, 12)
        e("s_waitcnt lgkmcnt(0)")
        srd_ws(a, 32, WS_TS, 0x100000)
        e("s_lshl_b32 s53, s2, 3")
        e(f"s_add_u32 s53, s53, s{sWAVE}")
        e("s_lshl_b32 s53, s53, 6")
        for i in range(13): e(f"v_mov_b32 v{16+i}, s{60+2*i}")
        e("v_mov_b32 v4, 0")
        e("s_mov_b64 exec, 1")
        for q in range(3):
            e(f"buffer_store_dwordx4 v[{16+4*q}:{19+4*q}], v4, s[32:35], s53 offen offset:{16*q}")
        e("buffer_store_dword v28, v4, s[32:35], s53 offen offset:48")
    a.label("k_done")
    e("s_endpgm")
    short_table(a, "otab", o_sigma_to_he())
    perm_table(a, "ftab")
    a('.section .rodata,"a"')
    a(".p2align 6")
    a(kernel_desc(NAME, 256, 102, 256))
    open(fname, "w").write(a.text())

if __name__ == "__main__":
    build("mega_ts.s", ts=True, spin=20000)
    build("mega.s", ts=False)
```

```python
from asmlib import *
from common import *
from gen_ffn import magic, sdiv, f2u, GC0, GC1, perm_table
from gen_attn import ln_rows, short_table, softmax9, LOG2E
import gen_attn

sX, sWQKV, sWPHI, sWO, sWG, sWU, sWD, sOUT, sDBG, sWS = 4, 6, 8, 10, 14, 16, 18, 20, 22, 24
sWAVE, sTAG, sSPIN = 26, 27, 28
SC = " sc0 sc1"

def srd(a, d, p, nbytes):
    a.e(f"s_mov_b32 s{d}, s{p}"); a.e(f"s_mov_b32 s{d+1}, s{p+1}")
    a.e(f"s_mov_b32 s{d+2}, {hex(nbytes)}"); a.e(f"s_mov_b32 s{d+3}, 0x20000")
def srd_ws(a, d, off, nbytes):
    o = hex(off) if isinstance(off, int) else off
    a.e(f"s_add_u32 s{d}, s{sWS}, {o}"); a.e(f"s_addc_u32 s{d+1}, s{sWS+1}, 0")
    a.e(f"s_mov_b32 s{d+2}, {hex(nbytes)}"); a.e(f"s_mov_b32 s{d+3}, 0x20000")

class Ctx:
    def __init__(self, ts): self.ts = ts; self.nst = 0

def stamp(a, C, i):
    if C.ts:
        a.e(f"s_memrealtime s[{60+2*i}:{61+2*i}]")

def signal(a, b, lab, arr_stride_idx="s2"):
    e = a.e
    e("s_waitcnt vmcnt(0) lgkmcnt(0)")
    e("s_barrier")
    e(f"s_cmp_lg_u32 s{sWAVE}, 0")
    e(f"s_cbranch_scc1 {lab}")
    srd_ws(a, 32, WS_FL + b*256*FL_STRIDE, 256*FL_STRIDE)
    e(f"s_lshl_b32 s29, s2, 7")
    e(f"v_mov_b32 v4, s{sTAG}")
    e("v_mov_b32 v5, 0")
    e("s_mov_b64 exec, 1")
    e(f"buffer_store_dword v4, v5, s[32:35], s29 offen{SC}")
    e("s_mov_b64 exec, -1")
    a.label(lab)

def poll_all(a, b, lab):
    e = a.e
    srd_ws(a, 32, WS_FL + b*256*FL_STRIDE, 256*FL_STRIDE)
    e(f"v_lshlrev_b32 v4, 7, v1")
    e(f"v_add_u32 v5, 0x2000, v4")
    e(f"v_add_u32 v6, 0x4000, v4")
    e(f"v_add_u32 v7, 0x6000, v4")
    a.label(lab)
    for q in range(4):
        e(f"buffer_load_dword v{8+q}, v{4+q}, s[32:35], 0 offen{SC}")
    e("s_waitcnt vmcnt(0)")
    for q in range(4):
        e(f"v_xor_b32 v{8+q}, s{sTAG}, v{8+q}")
    e("v_or_b32 v8, v8, v9")
    e("v_or3_b32 v8, v8, v10, v11")
    e("v_cmp_ne_u32 vcc, 0, v8")
    e(f"s_cmp_eq_u32 s{sSPIN}, 0")
    e(f"s_cbranch_scc1 {lab}_x")
    e(f"s_sub_u32 s{sSPIN}, s{sSPIN}, 1")
    e(f"s_cbranch_vccnz {lab}")
    a.label(f"{lab}_x")

def poll_list(a, b, sbase, n, stride_wg, lab):
    e = a.e
    srd_ws(a, 32, WS_FL + b*256*FL_STRIDE, 256*FL_STRIDE)
    e(f"v_mul_u32_u24 v4, {stride_wg*FL_STRIDE}, v1")
    e(f"s_lshl_b32 s29, s{sbase}, 7")
    e(f"s_mov_b64 exec, {(1<<n)-1}")
    a.label(lab)
    e(f"buffer_load_dword v8, v4, s[32:35], s29 offen{SC}")
    e("s_waitcnt vmcnt(0)")
    e(f"v_cmp_ne_u32 vcc, s{sTAG}, v8")
    e(f"s_cmp_eq_u32 s{sSPIN}, 0")
    e(f"s_cbranch_scc1 {lab}_x")
    e(f"s_sub_u32 s{sSPIN}, s{sSPIN}, 1")
    e(f"s_cbranch_vccnz {lab}")
    a.label(f"{lab}_x")
    e("s_mov_b64 exec, -1")

def pack_task(a, lab, sT, vt=16, st=80, nt=True):
    e = a.e
    ntf = " nt" if nt else ""
    srd_ws(a, 36, WS_W, WS_W_BYTES)
    e(f"s_cmp_ge_u32 s{sT}, 1296")
    e(f"s_cbranch_scc1 {lab}_w2")
    sj, sb, sks, s0, s1, s2, s3 = [st+i for i in range(7)]
    sstr = st+8; ssel = st+10
    sdiv(a, f"s{sj}", f"s{sT}", 162)
    e(f"s_mul_i32 s{s0}, s{sj}, 162")
    e(f"s_sub_u32 s{s0}, s{sT}, s{s0}")
    sdiv(a, f"s{sb}", f"s{s0}", 18)
    e(f"s_mul_i32 s{s1}, s{sb}, 18")
    e(f"s_sub_u32 s{sks}, s{s0}, s{s1}")
    e(f"s_mul_i32 s{s0}, s{sks}, 294912")
    e(f"s_mul_i32 s{s1}, s{sj}, 1152")
    e(f"s_add_u32 s{s0}, s{s0}, s{s1}")
    e(f"s_lshl_b32 s{s1}, s{sb}, 7")
    e(f"s_add_u32 s{s0}, s{s0}, s{s1}")
    L, O, va = vt, vt+32, vt+64
    t0, t1, t2, t3 = vt+66, vt+67, vt+68, vt+69
    e(f"v_lshrrev_b32 v{t0}, 4, v1")
    e(f"v_mul_u32_u24 v{t0}, 0x12000, v{t0}")
    e(f"v_bfe_u32 v{t1}, v1, 2, 2")
    e(f"v_lshlrev_b32 v{t1}, 5, v{t1}")
    e(f"v_and_b32 v{t2}, 1, v1")
    e(f"v_lshlrev_b32 v{t2}, 4, v{t2}")
    e(f"v_add3_u32 v{t0}, v{t0}, v{t1}, v{t2}")
    e(f"v_add_u32 v{t0}, s{s0}, v{t0}")
    e(f"v_and_b32 v{t1}, 2, v1")
    e(f"v_cmp_eq_u32 vcc, 0, v{t1}")
    e(f"v_mov_b32 v{t2}, s{sWU}")
    e(f"v_mov_b32 v{t3}, s{sWG}")
    e(f"v_cndmask_b32 v{va}, v{t2}, v{t3}, vcc")
    e(f"v_mov_b32 v{t2}, s{sWU+1}")
    e(f"v_mov_b32 v{t3}, s{sWG+1}")
    e(f"v_cndmask_b32 v{va+1}, v{t2}, v{t3}, vcc")
    e(f"v_add_co_u32 v{va}, vcc, v{va}, v{t0}")
    e(f"s_mov_b32 s{sstr}, 9216")
    e(f"s_mov_b32 s{sstr+1}, 0")
    e(f"v_addc_co_u32 v{va+1}, vcc, 0, v{va+1}, vcc")
    for jj in range(8):
        e(f"global_load_dwordx4 v[{L+4*jj}:{L+4*jj+3}], v[{va}:{va+1}], off{ntf}")
        if jj < 7:
            e(f"v_lshl_add_u64 v[{va}:{va+1}], v[{va}:{va+1}], 0, s[{sstr}:{sstr+1}]")
    e(f"s_mov_b32 s{ssel}, 0x05040100")
    e(f"s_mov_b32 s{ssel+1}, 0x07060302")
    e(f"s_mul_i32 s{s3}, s{sj}, {SPLIT_BYTES}")
    e("s_waitcnt vmcnt(0)")
    for u in range(8):
        for q in range(4):
            e(f"v_perm_b32 v{O+4*u+q}, v{L+4*(2*q+1)+u//2}, v{L+4*(2*q)+u//2}, s{ssel+(u&1)}")
    for u in range(8):
        e(f"s_lshl_b32 s{s0}, s{sb}, 3")
        e(f"s_add_u32 s{s0}, s{s0}, {u}")
        e(f"s_mul_i32 s{s1}, s{s0}, 57")
        e(f"s_lshr_b32 s{s1}, s{s1}, 9")
        e(f"s_mul_i32 s{s2}, s{s1}, 9")
        e(f"s_sub_u32 s{s0}, s{s0}, s{s2}")
        e(f"s_mul_i32 s{s2}, s{s1}, 234")
        e(f"s_add_u32 s{s2}, s{s2}, 72")
        e(f"s_cmp_lt_u32 s{s1}, 4")
        e(f"s_mul_i32 s{s1}, s{s1}, 252")
        e(f"s_cselect_b32 s{s2}, s{s1}, s{s2}")
        e(f"s_mul_i32 s{s1}, s{sks}, 5")
        e(f"s_add_u32 s{s1}, s{s1}, 68")
        e(f"s_lshl_b32 s{st+7}, s{sks}, 2")
        e(f"s_cmp_lt_u32 s{s0}, 4")
        e(f"s_cselect_b32 s{s1}, s{st+7}, s{s1}")
        e(f"s_add_u32 s{s1}, s{s1}, s{s0}")
        e(f"s_add_u32 s{s1}, s{s1}, s{s2}")
        e(f"s_lshl_b32 s{s1}, s{s1}, 10")
        e(f"s_add_u32 s{s1}, s{s1}, s{s3}")
        e(f"buffer_store_dwordx4 v[{O+4*u}:{O+4*u+3}], v2, s[36:39], s{s1} offen{SC}")
    e(f"s_branch {lab}_end")
    a.label(f"{lab}_w2")
    e(f"s_sub_u32 s{sT}, s{sT}, 1296")
    srd(a, 40, sWD, 4608*576*2)
    e("s_getpc_b64 s[44:45]")
    a.label(f"{lab}_pc")
    e(f"s_add_u32 s44, s44, ftab-{lab}_pc")
    e("s_addc_u32 s45, s45, 0")
    sdiv(a, f"s{sj}", f"s{sT}", 162)
    e(f"s_mul_i32 s{s0}, s{sj}, 162")
    e(f"s_sub_u32 s{s0}, s{sT}, s{s0}")
    sdiv(a, f"s{sks}", f"s{s0}", 9)
    e(f"s_mul_i32 s{s1}, s{sks}, 9")
    e(f"s_sub_u32 s{sb}, s{s0}, s{s1}")
    L, O, T, A = vt, vt+16, vt+32, vt+36
    t0, t1 = vt+44, vt+45
    e(f"v_lshrrev_b32 v{t0}, 4, v1")
    e(f"v_lshlrev_b32 v{t0}, 4, v{t0}")
    e(f"s_lshl_b32 s{s0}, s{sks}, 6")
    e(f"v_add_u32 v{t0}, s{s0}, v{t0}")
    e(f"global_load_dwordx4 v[{T}:{T+3}], v{t0}, s[44:45]")
    e(f"s_mul_i32 s{s0}, s{sj}, {576*1152}")
    e(f"s_lshl_b32 s{s1}, s{sb}, 7")
    e(f"s_add_u32 s{s0}, s{s0}, s{s1}")
    e(f"v_and_b32 v{t1}, 15, v1")
    e(f"v_lshlrev_b32 v{t1}, 3, v{t1}")
    e(f"v_add_u32 v{t1}, s{s0}, v{t1}")
    e(f"s_movk_i32 s{s2}, 1152")
    e("s_waitcnt vmcnt(0)")
    for jj in range(8):
        if jj % 2 == 0: e(f"v_and_b32 v{A+jj}, 0xffff, v{T+jj//2}")
        else: e(f"v_lshrrev_b32 v{A+jj}, 16, v{T+jj//2}")
        e(f"v_mad_u32_u24 v{A+jj}, v{A+jj}, s{s2}, v{t1}")
        e(f"buffer_load_dwordx2 v[{L+2*jj}:{L+2*jj+1}], v{A+jj}, s[40:43], 0 offen{ntf}")
    e(f"s_mov_b32 s{ssel}, 0x05040100")
    e(f"s_mov_b32 s{ssel+1}, 0x07060302")
    e(f"s_mul_i32 s{s3}, s{sj}, {SPLIT_BYTES}")
    e("s_waitcnt vmcnt(0)")
    for u in range(4):
        for q in range(4):
            e(f"v_perm_b32 v{O+4*u+q}, v{L+2*(2*q+1)+u//2}, v{L+2*(2*q)+u//2}, s{ssel+(u&1)}")
    for u in range(4):
        e(f"s_cmp_lt_u32 s{sb}, 8")
        e(f"s_cselect_b32 s{s1}, s{sb}, {u}")
        e(f"s_cselect_b32 s{s0}, {u}, 4")
        e(f"s_mul_i32 s{s2}, s{s1}, 234")
        e(f"s_add_u32 s{s2}, s{s2}, 72")
        e(f"s_cmp_lt_u32 s{s1}, 4")
        e(f"s_mul_i32 s{s1}, s{s1}, 252")
        e(f"s_cselect_b32 s{s2}, s{s1}, s{s2}")
        e(f"s_cselect_b32 s{s1}, 3, 2")
        e(f"s_mul_i32 s{s1}, s{s1}, s{sks}")
        e(f"s_add_u32 s{s1}, s{s1}, 196")
        e(f"s_lshl_b32 s{st+7}, s{sks}, 1")
        e(f"s_add_u32 s{st+7}, s{st+7}, 162")
        e(f"s_cmp_lt_u32 s{s0}, 2")
        e(f"s_cselect_b32 s{s1}, s{st+7}, s{s1}")
        e(f"s_add_u32 s{s1}, s{s1}, s{s0}")
        e(f"s_add_u32 s{s1}, s{s1}, s{s2}")
        e(f"s_lshl_b32 s{s1}, s{s1}, 10")
        e(f"s_add_u32 s{s1}, s{s1}, s{s3}")
        e(f"buffer_store_dwordx4 v[{O+4*u}:{O+4*u+3}], v2, s[36:39], s{s1} offen{SC}")
    a.label(f"{lab}_end")

def p0_ln(a, C):
    e = a.e
    srd(a, 36, sX, S*D*2)
    srd_ws(a, 40, WS_XNF, XNF_BYTES)
    X, TMP = 16, 56
    e("v_lshrrev_b32 v4, 3, v1")
    e("v_and_b32 v5, 7, v1")
    e("v_mul_u32_u24 v6, 1152, v4")
    e("v_lshl_add_u32 v6, v5, 4, v6")
    e("s_mul_i32 s52, s2, 9216")
    for i in range(9):
        e(f"buffer_load_dwordx4 v[{X+4*i}:{X+4*i+3}], v6, s[36:39], s52 offen offset:{i*128}")
    e(f"s_cmp_ge_u32 s2, {KV_BYTES//1024}")
    e(f"s_cbranch_scc1 p0_nokv")
    srd_ws(a, 44, WS_KV, KV_BYTES)
    for i in range(4): e(f"v_mov_b32 v{72+i}, 0")
    e("s_lshl_b32 s53, s2, 10")
    e(f"buffer_store_dwordx4 v[72:75], v2, s[44:47], s53 offen{SC}")
    a.label("p0_nokv")
    e("v_lshrrev_b32 v7, 1, v5")
    e("v_lshlrev_b32 v7, 10, v7")
    e("v_and_b32 v8, 1, v5")
    e("v_lshl_add_u32 v7, v8, 3, v7")
    e("s_and_b32 s53, s2, 3")
    e("s_lshl_b32 s53, s53, 3")
    e("v_add_u32 v8, s53, v4")
    e("v_lshl_add_u32 v7, v8, 4, v7")
    e("s_lshr_b32 s53, s2, 2")
    e("s_mul_i32 s53, s53, 36864")
    e("s_waitcnt vmcnt(0)")
    ln_rows(e, X, TMP)
    for i in range(9):
        e(f"buffer_store_dwordx2 v[{X+4*i}:{X+4*i+1}], v7, s[40:43], s53 offen{SC}")
        e(f"buffer_store_dwordx2 v[{X+4*i+2}:{X+4*i+3}], v7, s[40:43], s53 offen offset:512{SC}")
        if i < 8: e("s_add_u32 s53, s53, 4096")

def p0_fold(a, C, sT):
    e = a.e
    sdiv(a, "s52", f"s{sT}", 18)
    e("s_mul_i32 s53, s52, 18")
    e(f"s_sub_u32 s53, s{sT}, s53")
    srd(a, 36, sWQKV, 576*1728*2)
    srd(a, 40, sWPHI, 32*18*18*2)
    srd_ws(a, 44, WS_WPF, WPF_BYTES)
    e("v_and_b32 v13, 31, v1")
    e("v_lshrrev_b32 v4, 5, v1")
    e("v_mul_u32_u24 v5, 3456, v13")
    e("v_lshl_add_u32 v6, v4, 4, v5")
    e(f"s_mul_i32 s54, s53, {32*3456}")
    e("s_mul_i32 s55, s52, 36")
    e("s_add_u32 s54, s54, s55")
    XQ, XK, ZV, YQ, YK = 8+8, 12+8, 16+8, 20+8, 24+8
    e(f"buffer_load_dwordx4 v[{XQ}:{XQ+3}], v6, s[36:39], s54 offen")
    e(f"buffer_load_dwordx4 v[{XK}:{XK+3}], v6, s[36:39], s54 offen offset:1152")
    e(f"buffer_load_dwordx4 v[{ZV}:{ZV+3}], v6, s[36:39], s54 offen offset:2304")
    e(f"buffer_load_dword v{YQ}, v5, s[36:39], s54 offen offset:32")
    e(f"buffer_load_dword v{YK}, v5, s[36:39], s54 offen offset:{1152+32}")
    e(f"buffer_load_dword v{YQ+1}, v5, s[36:39], s54 offen offset:{2304+32}")
    e("v_bfe_u32 v7, v13, 2, 1")
    e("v_lshrrev_b32 v36, 3, v13")
    e("v_and_b32 v37, 3, v13")
    e("v_lshl_add_u32 v36, v36, 2, v37")
    e("v_mul_u32_u24 v37, 9, v7")
    e("v_add_u32 v38, v37, v36")
    e("v_lshlrev_b32 v39, 1, v38")
    e("v_mov_b32 v40, 0x40000000")
    e("v_cmp_gt_u32 vcc, 9, v36")
    e("s_mul_i32 s55, s52, 648")
    e("s_nop 0")
    e("v_cndmask_b32 v39, v40, v39, vcc")
    e("v_mul_u32_u24 v41, 288, v4")
    e("v_add_u32 v41, v41, v39")
    BX, BY0, BY1, BZ0, BZ1 = 44, 48, 52, 56, 60
    for j in range(8):
        e(f"buffer_load_ushort v{112+j}, v41, s[40:43], s55 offen offset:{j*36}")
    e("v_cmp_eq_u32 vcc, 0, v4")
    e("s_nop 1")
    e("v_cndmask_b32 v42, v40, v39, vcc")
    e(f"buffer_load_ushort v120, v42, s[40:43], s55 offen offset:{16*36}")
    e(f"buffer_load_ushort v121, v42, s[40:43], s55 offen offset:{17*36}")
    e("v_add_u32 v64, -9, v38")
    e("v_mov_b32 v65, -100")
    e("v_cmp_lt_u32 vcc, 8, v36")
    e("s_nop 1")
    e("v_cndmask_b32 v66, v65, v64, vcc")
    e("v_add_u32 v64, 7, v64")
    e("v_add_u32 v67, -9, v36")
    e("v_cmp_gt_u32 vcc, 2, v67")
    e("s_nop 1")
    e("v_cndmask_b32 v67, v65, v64, vcc")
    e("v_lshlrev_b32 v68, 3, v4")
    e("v_mov_b32 v69, 0x3f80")
    for (ereg, BZ, BY) in ((66, BZ0, BY0), (67, BZ1, BY1)):
        e(f"v_sub_u32 v70, v{ereg}, v68")
        e("v_and_b32 v71, 1, v70")
        e("v_lshlrev_b32 v71, 4, v71")
        e("v_lshlrev_b32 v71, v71, v69")
        e("v_ashrrev_i32 v70, 1, v70")
        for q in range(4):
            e(f"v_cmp_eq_u32 vcc, {q}, v70")
            e("s_nop 1")
            e(f"v_cndmask_b32 v{BZ+q}, 0, v71, vcc")
        e(f"v_add_u32 v70, -16, v{ereg}")
        e("v_and_b32 v71, 1, v70")
        e("v_lshlrev_b32 v71, 4, v71")
        e("v_lshlrev_b32 v71, v71, v69")
        e("v_ashrrev_i32 v70, 1, v70")
        e("v_or_b32 v70, v70, v4")
        e("v_cmp_eq_u32 vcc, 0, v70")
        e("s_nop 1")
        e(f"v_cndmask_b32 v{BY+1}, 0, v71, vcc")
        e(f"v_mov_b32 v{BY+2}, 0")
        e(f"v_mov_b32 v{BY+3}, 0")
    e("s_waitcnt vmcnt(0)")
    for q in range(4):
        e(f"v_lshl_or_b32 v{BX+q}, v{113+2*q}, 16, v{112+2*q}")
    e(f"v_lshl_or_b32 v{BY0}, v121, 16, v120")
    e(f"v_mov_b32 v{BY1}, v{BY0}")
    e("v_cmp_eq_u32 vcc, 0, v4")
    e(f"v_mov_b32 v{YK+1}, v{YQ+1}")
    e("s_nop 0")
    e(f"v_cndmask_b32 v{YQ}, 0, v{YQ}, vcc")
    e(f"v_cndmask_b32 v{YQ+1}, 0, v{YQ+1}, vcc")
    e(f"v_cndmask_b32 v{YK}, 0, v{YK}, vcc")
    e(f"v_cndmask_b32 v{YK+1}, 0, v{YK+1}, vcc")
    for r in (YQ+2, YQ+3, YK+2, YK+3): e(f"v_mov_b32 v{r}, 0")
    e("s_nop 1")
    T0, T1 = 72, 88
    mf = lambda d, A, B, c: e(f"v_mfma_f32_32x32x16_bf16 v[{d}:{d+15}], v[{A}:{A+3}], v[{B}:{B+3}], {c}")
    mf(T0, XQ, BX, "0"); mf(T1, XK, BX, "0")
    mf(T0, YQ, BY0, f"v[{T0}:{T0+15}]"); mf(T1, YK, BY1, f"v[{T1}:{T1+15}]")
    mf(T0, ZV, BZ0, f"v[{T0}:{T0+15}]"); mf(T1, ZV, BZ1, f"v[{T1}:{T1+15}]")
    e(f"s_mul_i32 s54, s52, {WPF_HEAD}")
    e("s_lshl_b32 s55, s53, 12")
    e("s_add_u32 s54, s54, s55")
    e("s_nop 15")
    for tile, T in ((0, T0), (1, T1)):
        for aa in range(2):
            O = 124 + (tile*2+aa)*4
            for q in range(4):
                e(f"v_cvt_pk_bf16_f32 v{O+q}, v{T+8*aa+2*q}, v{T+8*aa+2*q+1}")
            e(f"buffer_store_dwordx4 v[{O}:{O+3}], v2, s[44:47], s54 offen offset:{(aa*2+tile)*1024}{SC}")

def p0_wo(a, C, sT, lab):
    e = a.e
    sdiv(a, "s52", f"s{sT}", 6)
    e("s_mul_i32 s53, s52, 6")
    e(f"s_sub_u32 s53, s{sT}, s53")
    srd(a, 36, sWO, 576*576*2)
    srd_ws(a, 40, WS_WOF, WOF_BYTES)
    e("s_getpc_b64 s[44:45]")
    a.label(f"{lab}_pc")
    e(f"s_add_u32 s44, s44, otab-{lab}_pc")
    e("s_addc_u32 s45, s45, 0")
    e("v_lshrrev_b32 v4, 4, v1")
    e("v_and_b32 v5, 15, v1")
    e("v_lshlrev_b32 v6, 4, v4")
    e("s_mul_i32 s54, s53, 192")
    e("v_add_u32 v6, s54, v6")
    for k3 in range(3):
        e(f"global_load_dwordx4 v[{16+4*k3}:{19+4*k3}], v6, s[44:45] offset:{k3*64}")
    e("s_lshl_b32 s54, s52, 5")
    e("v_lshlrev_b32 v5, 1, v5")
    e("v_add_u32 v5, s54, v5")
    e("s_movk_i32 s55, 1152")
    e("s_waitcnt vmcnt(0)")
    for k3 in range(3):
        for j in range(8):
            T = 16+4*k3+j//2
            A_ = 32 + k3*8 + j
            if j%2 == 0: e(f"v_and_b32 v{A_}, 0xffff, v{T}")
            else: e(f"v_lshrrev_b32 v{A_}, 16, v{T}")
            e(f"v_mad_u32_u24 v{A_}, v{A_}, s55, v5")
            e(f"buffer_load_ushort v{72+8*k3+j}, v{A_}, s[36:39], 0 offen")
    e("s_mul_i32 s54, s52, 18")
    e("s_mul_i32 s55, s53, 3")
    e("s_add_u32 s54, s54, s55")
    e("s_lshl_b32 s54, s54, 10")
    e("s_waitcnt vmcnt(0)")
    for k3 in range(3):
        for q in range(4):
            e(f"v_lshl_or_b32 v{56+4*k3+q}, v{72+8*k3+2*q+1}, 16, v{72+8*k3+2*q}")
        e(f"buffer_store_dwordx4 v[{56+4*k3}:{59+4*k3}], v2, s[40:43], s54 offen offset:{k3*1024}{SC}")

def phase0(a, C):
    e = a.e
    e(f"s_cmp_eq_u32 s{sWAVE}, 0")
    e("s_cbranch_scc0 p0_n0")
    p0_ln(a, C)
    e("s_branch p0_done")
    a.label("p0_n0")
    e(f"s_cmp_ge_u32 s{sWAVE}, 3")
    e("s_cbranch_scc1 p0_n2")
    e(f"s_sub_u32 s56, s{sWAVE}, 1")
    e("s_lshl_b32 s56, s56, 8")
    e("s_add_u32 s56, s56, s2")
    e("s_branch p0_fold")
    a.label("p0_n2")
    e(f"s_cmp_eq_u32 s{sWAVE}, 3")
    e("s_cbranch_scc0 p0_n3")
    e("s_add_u32 s56, s2, 512")
    e("s_cmp_lt_u32 s2, 64")
    e("s_cbranch_scc1 p0_fold")
    e("s_sub_u32 s56, s2, 64")
    e("s_branch p0_wo")
    a.label("p0_n3")
    e(f"s_cmp_eq_u32 s{sWAVE}, 4")
    e("s_cbranch_scc0 p0_n4")
    e("s_add_u32 s56, s2, 192")
    e("s_cmp_lt_u32 s2, 24")
    e("s_cbranch_scc1 p0_wo")
    e("s_sub_u32 s56, s2, 24")
    e("s_branch p0_pack")
    a.label("p0_n4")
    e(f"s_sub_u32 s56, s{sWAVE}, 5")
    e("s_lshl_b32 s56, s56, 8")
    e("s_add_u32 s56, s56, s2")
    e("s_add_u32 s56, s56, 232")
    a.label("p0_pack")
    pack_task(a, "pk0", 56)
    e("s_branch p0_done")
    a.label("p0_fold")
    p0_fold(a, C, 56)
    e("s_branch p0_done")
    a.label("p0_wo")
    p0_wo(a, C, 56, "p0wo")
    a.label("p0_done")

K1_PK, K1_V = 73728, 92160
def phase1(a, C):
    e = a.e
    B, D0, D1, A0, T = 16, 160, 176, 192, 208
    e("s_and_b32 s53, s2, 7")
    e("s_lshr_b32 s54, s2, 3")
    e("s_and_b32 s51, s53, 3")
    e("s_lshl_b32 s51, s51, 1")
    e("s_and_b32 s55, s54, 1")
    e("s_add_u32 s51, s51, s55")
    e("s_lshr_b32 s52, s53, 2")
    e("s_lshl_b32 s52, s52, 4")
    e("s_lshr_b32 s55, s54, 1")
    e("s_add_u32 s52, s52, s55")
    e(f"s_mul_i32 s53, s52, {WPF_HEAD}")
    e(f"s_add_u32 s53, s53, {WS_WPF}")
    srd_ws(a, 36, "s53", WPF_HEAD)
    srd_ws(a, 40, WS_XNF, XNF_BYTES)
    e(f"s_mul_i32 s54, s{sWAVE}, 9216")
    for i in range(9):
        if i % 4 == 0:
            e(f"s_add_u32 s55, s54, {i*1024}")
            e("s_mov_b32 m0, s55")
            e("s_nop 0")
        e(f"buffer_load_dwordx4 v2, s[36:39], s55 offen offset:{(i%4)*1024} lds")
    e("s_barrier")
    RB = 12
    e("s_lshl_b32 s56, s51, 3")
    e(f"s_add_u32 s56, s56, s{sWAVE}")
    e("s_mul_i32 s57, s56, 36864")
    st = {"blk": 0}
    def bload(s):
        while st["blk"] < s//4:
            e("s_add_u32 s57, s57, 4096"); st["blk"] += 1
        r = B + 4*(s % RB)
        e(f"buffer_load_dwordx4 v[{r}:{r+3}], v2, s[40:43], s57 offen offset:{(s%4)*1024}")
    for s in range(RB): bload(s)
    srd_ws(a, 44, WS_PHIQ, PHIQ_BYTES)
    e(f"s_mul_i32 s53, s52, {KV_HEAD}")
    e(f"s_add_u32 s53, s53, {WS_KV}")
    srd_ws(a, 48, "s53", KV_HEAD)
    e(f"s_mov_b32 s58, {hex(f2u(LOG2E))}")
    e("v_add_u32 v14, 0x10000, v2")
    e(f"s_waitcnt vmcnt({RB})")
    e("s_barrier")
    def aread(s):
        r = A0 + (s%2)*8
        va, off = (2, s*2048) if s < 32 else (14, s*2048-65536)
        e(f"ds_read_b128 v[{r}:{r+3}], v{va} offset:{off}")
        e(f"ds_read_b128 v[{r+4}:{r+7}], v{va} offset:{off+1024}")
    aread(0)
    for s in range(36):
        vm = min(RB-1, 35-s)
        if s < 35:
            aread(s+1)
            e(f"s_waitcnt vmcnt({vm}) lgkmcnt(2)")
        else:
            e("s_waitcnt vmcnt(0) lgkmcnt(0)")
        r = A0 + (s%2)*8
        rb = B + 4*(s % RB)
        c0 = "0" if s == 0 else f"v[{D0}:{D0+15}]"
        c1 = "0" if s == 0 else f"v[{D1}:{D1+15}]"
        e(f"v_mfma_f32_32x32x16_bf16 v[{D0}:{D0+15}], v[{r}:{r+3}], v[{rb}:{rb+3}], {c0}")
        e(f"v_mfma_f32_32x32x16_bf16 v[{D1}:{D1+15}], v[{r+4}:{r+7}], v[{rb}:{rb+3}], {c1}")
        if s + RB < 36: bload(s + RB)
    e("s_nop 15")
    OQ, OK_ = 16, 28
    softmax9(e, D0, OQ, T, 58)
    e("s_lshl_b32 s54, s56, 5")
    e("s_add_u32 s54, s54, s52")
    e(f"s_mul_i32 s54, s54, {PHIQ_BLK}")
    e(f"buffer_store_dwordx4 v[{OQ}:{OQ+3}], v2, s[44:47], s54 offen{SC}")
    e(f"buffer_store_dwordx4 v[{OQ+4}:{OQ+7}], v2, s[44:47], s54 offen offset:1024{SC}")
    e(f"buffer_store_dword v{OQ+8}, v3, s[44:47], s54 offen offset:2048{SC}")
    softmax9(e, D1, OK_, T, 58)
    e("v_and_b32 v5, 31, v1")
    e("v_lshrrev_b32 v6, 5, v1")
    e(f"s_lshl_b32 s54, s{sWAVE}, 5")
    e("v_add_u32 v7, s54, v5")
    e("v_mul_u32_u24 v8, 72, v7")
    e("v_mad_u32_u24 v8, v6, 36, v8")
    e(f"v_add_u32 v8, {K1_PK}, v8")
    for q in range(4):
        e(f"ds_write2_b32 v8, v{OK_+2*q}, v{OK_+2*q+1} offset0:{2*q} offset1:{2*q+1}")
    e(f"ds_write_b32 v8, v{OK_+8} offset:32")
    OV = 40
    vv = [D0+9+i for i in range(7)] + [D1+9, D1+10]
    e("v_cmp_eq_u32 vcc, 0, v6")
    e("v_mov_b32 v9, 1.0")
    e("s_nop 0")
    e("v_cndmask_b32 v9, 0, v9, vcc")
    for q in range(4):
        e(f"v_cvt_pk_bf16_f32 v{OV+q}, v{vv[2*q]}, v{vv[2*q+1]}")
    e(f"v_cvt_pk_bf16_f32 v{OV+4}, v{vv[8]}, v9")
    e("v_mul_u32_u24 v8, 40, v7")
    e("v_mad_u32_u24 v8, v6, 20, v8")
    e(f"v_add_u32 v8, {K1_V}, v8")
    for q in range(2):
        e(f"ds_write2_b32 v8, v{OV+2*q}, v{OV+2*q+1} offset0:{2*q} offset1:{2*q+1}")
    e(f"ds_write_b32 v8, v{OV+4} offset:16")
    e("s_waitcnt lgkmcnt(0)")
    e("s_barrier")
    e(f"s_cmp_ge_u32 s{sWAVE}, 2")
    e("s_cbranch_scc1 p1_kvend")
    e("v_bfe_u32 v10, v1, 2, 2")
    e("v_lshrrev_b32 v11, 5, v1")
    e("v_lshl_add_u32 v10, v11, 3, v10")
    e("v_bfe_u32 v11, v1, 4, 1")
    e("v_and_b32 v12, 3, v1")
    e("v_lshl_add_u32 v11, v11, 2, v12")
    e("v_lshlrev_b32 v11, 3, v11")
    e("v_mad_u32_u24 v12, v10, 40, v11")
    e(f"v_add_u32 v12, {K1_V}, v12")
    e("v_mul_u32_u24 v13, 72, v10")
    e("v_add_u32 v13, v13, v11")
    e(f"s_lshl_b32 s54, s{sWAVE}, 6")
    e(f"s_add_u32 s54, s54, {K1_PK}")
    e("v_add_u32 v13, s54, v13")
    AV, BP, KD = 48, 112, 176
    for st_ in range(16):
        for wh in range(2):
            e(f"ds_read_b64_tr_b16 v[{AV+4*st_+2*wh}:{AV+4*st_+2*wh+1}], v12 offset:{(16*st_+4*wh)*40}")
            e(f"ds_read_b64_tr_b16 v[{BP+4*st_+2*wh}:{BP+4*st_+2*wh+1}], v13 offset:{(16*st_+4*wh)*72}")
        if st_ >= 3:
            sp = st_ - 3
            e("s_waitcnt lgkmcnt(12)")
            c = "0" if sp == 0 else f"v[{KD}:{KD+15}]"
            e(f"v_mfma_f32_32x32x16_bf16 v[{KD}:{KD+15}], v[{AV+4*sp}:{AV+4*sp+3}], v[{BP+4*sp}:{BP+4*sp+3}], {c}")
    for sp in range(13, 16):
        e(f"s_waitcnt lgkmcnt({(15-sp)*4})")
        e(f"v_mfma_f32_32x32x16_bf16 v[{KD}:{KD+15}], v[{AV+4*sp}:{AV+4*sp+3}], v[{BP+4*sp}:{BP+4*sp+3}], v[{KD}:{KD+15}]")
    e("v_and_b32 v5, 31, v1")
    e("v_lshrrev_b32 v6, 5, v1")
    e("v_mul_u32_u24 v6, 576, v6")
    e("v_lshl_add_u32 v6, v5, 2, v6")
    e(f"s_lshl_b32 s54, s{sWAVE}, 7")
    e("v_add_u32 v6, s54, v6")
    e("v_mov_b32 v7, 0x40000000")
    e(f"s_cmp_eq_u32 s{sWAVE}, 0")
    e("s_cselect_b32 s55, 32, 4")
    e("v_cmp_gt_u32 vcc, s55, v5")
    e("s_nop 1")
    e("v_cndmask_b32 v6, v7, v6, vcc")
    e("v_cmp_gt_u32 vcc, 32, v1")
    e("s_nop 1")
    e("v_cndmask_b32 v8, v7, v6, vcc")
    e("s_nop 7")
    for r in range(12):
        off = ((r//4)*8 + r%4)*144
        e(f"buffer_atomic_add_f32 v{KD+r}, v{6 if r < 8 else 8}, s[48:51], 0 offen offset:{off}")
    a.label("p1_kvend")

K2_O = 98304
P2_PQ, P2_WO, P2_WO2, P2_T = 16, 64, 136, 208
def phase2_pre(a, C):
    e = a.e
    e("s_and_b32 s53, s2, 7")
    e("s_lshr_b32 s51, s2, 3")
    e("s_lshr_b32 s52, s51, 2")
    e("s_lshl_b32 s53, s53, 3")
    e("s_add_u32 s52, s52, s53")
    e("s_and_b32 s51, s51, 3")
    srd_ws(a, 44, WS_WOF, WOF_BYTES)
    e("s_mul_i32 s59, s51, 9")
    e(f"s_add_u32 s54, s59, s{sWAVE}")
    e("s_mul_i32 s54, s54, 18432")
    for ks in range(18):
        if ks and ks % 4 == 0: e("s_add_u32 s54, s54, 4096")
        e(f"buffer_load_dwordx4 v[{P2_WO+4*ks}:{P2_WO+4*ks+3}], v2, s[44:47], s54 offen offset:{(ks%4)*1024}")
    e(f"s_cmp_ge_u32 s{sWAVE}, 1")
    e("s_cbranch_scc1 p2_nowo2")
    e("s_add_u32 s54, s59, 8")
    e("s_mul_i32 s54, s54, 18432")
    for ks in range(18):
        if ks and ks % 4 == 0: e("s_add_u32 s54, s54, 4096")
        e(f"buffer_load_dwordx4 v[{P2_WO2+4*ks}:{P2_WO2+4*ks+3}], v2, s[44:47], s54 offen offset:{(ks%4)*1024}")
    a.label("p2_nowo2")

def phase2(a, C):
    e = a.e
    PQ, WO, WO2, T = P2_PQ, P2_WO, P2_WO2, P2_T
    srd_ws(a, 36, WS_KV, KV_BYTES)
    srd_ws(a, 40, WS_PHIQ, PHIQ_BYTES)
    e(f"s_mul_i32 s54, s{sWAVE}, {4*KV_HEAD}")
    e(f"s_mul_i32 s56, s{sWAVE}, 12288")
    e("s_sub_u32 s57, s56, s54")
    for k in range(12):
        if k % 4 == 0:
            e(f"s_add_u32 s55, s54, {k*1024}")
            e("s_add_u32 s58, s55, s57")
            e("s_mov_b32 m0, s58")
            e("s_nop 0")
        e(f"buffer_load_dwordx4 v2, s[36:39], s55 offen offset:{(k%4)*1024} lds")
    e("s_lshl_b32 s54, s52, 5")
    e(f"s_lshl_b32 s55, s{sWAVE}, 2")
    e("s_add_u32 s54, s54, s55")
    e(f"s_mul_i32 s54, s54, {PHIQ_BLK}")
    for i in range(4):
        r = PQ + 12*i
        e(f"buffer_load_dwordx4 v[{r}:{r+3}], v2, s[40:43], s54 offen")
        e(f"buffer_load_dwordx4 v[{r+4}:{r+7}], v2, s[40:43], s54 offen offset:1024")
        e(f"buffer_load_dword v{r+8}, v3, s[40:43], s54 offen offset:2048")
        for z in (9, 10, 11): e(f"v_mov_b32 v{r+z}, 0")
        if i < 3: e(f"s_add_u32 s54, s54, {PHIQ_BLK}")
    e("v_and_b32 v5, 31, v1")
    e("v_lshrrev_b32 v6, 5, v1")
    e("v_bfe_u32 v7, v5, 2, 1")
    e("v_lshrrev_b32 v8, 3, v5")
    e("v_and_b32 v9, 3, v5")
    e("v_lshl_add_u32 v8, v8, 2, v9")
    e("v_mad_u32_u24 v9, v7, 10, v8")
    e("v_mov_b32 v10, 9")
    e("v_cmp_eq_u32 vcc, 9, v8")
    e("s_nop 1")
    e("v_cndmask_b32 v9, v9, v10, vcc")
    e("v_mov_b32 v10, 19")
    e("v_cmp_lt_u32 vcc, 9, v8")
    e("s_nop 1")
    e("v_cndmask_b32 v9, v9, v10, vcc")
    e("v_mul_u32_u24 v9, 144, v9")
    e("v_mad_u32_u24 v9, v6, 64, v9")
    e("v_lshl_add_u32 v9, v6, 3, v9")
    e("v_add_u32 v9, s56, v9")
    F = T; AF = T + 18; DD = AF + 12
    for z in (9, 10, 11): e(f"v_mov_b32 v{AF+z}, 0")
    e("s_waitcnt vmcnt(12)")
    for i in range(4):
        for q in range(9):
            e(f"ds_read_b64 v[{F+2*q}:{F+2*q+1}], v9 offset:{i*KV_HEAD + q*8}")
        e("s_waitcnt lgkmcnt(0)")
        for q in range(9):
            e(f"v_cvt_pk_bf16_f32 v{AF+q}, v{F+2*q}, v{F+2*q+1}")
        e(f"s_waitcnt vmcnt({(3-i)*3})")
        e("s_nop 1")
        r = PQ + 12*i
        e(f"v_mfma_f32_32x32x16_bf16 v[{DD}:{DD+15}], v[{AF}:{AF+3}], v[{r}:{r+3}], 0")
        e(f"v_mfma_f32_32x32x16_bf16 v[{DD}:{DD+15}], v[{AF+4}:{AF+7}], v[{r+4}:{r+7}], v[{DD}:{DD+15}]")
        e(f"v_mfma_f32_32x32x16_bf16 v[{DD}:{DD+15}], v[{AF+8}:{AF+11}], v[{r+8}:{r+11}], v[{DD}:{DD+15}]")
        e("s_nop 15")
        e(f"v_add_f32 v{F}, {hex(f2u(1e-6))}, v{DD+9}")
        e(f"v_rcp_f32 v{F}, v{F}")
        e("s_nop 0")
        for q in range(9):
            e(f"v_mul_f32 v{r+q}, v{DD+q}, v{F}")
    for p in range(2):
        for i in range(9):
            e(f"v_cvt_pk_bf16_f32 v{T+9*p+i}, v{PQ+12*(2*p)+i}, v{PQ+12*(2*p+1)+i}")
    e("v_bfe_u32 v7, v5, 1, 3")
    e("v_mul_u32_u24 v8, 1152, v5")
    e(f"v_add_u32 v8, {K2_O}, v8")
    e(f"s_mul_i32 s54, s{sWAVE}, 9")
    e("v_lshlrev_b32 v9, 2, v6")
    e("v_add_u32 v9, s54, v9")
    for q4 in range(4):
        e(f"v_add_u32 v10, {q4}, v9")
        e("v_xor_b32 v10, v10, v7")
        e("v_lshl_add_u32 v10, v10, 4, v8")
        e(f"ds_write_b128 v10, v[{T+4*q4}:{T+4*q4+3}]")
    e("s_add_u32 s54, s54, 8")
    e("v_xor_b32 v10, s54, v7")
    e("v_lshl_add_u32 v10, v10, 4, v8")
    e("v_lshl_add_u32 v10, v6, 3, v10")
    e(f"ds_write_b64 v10, v[{T+16}:{T+17}]")
    srd(a, 36, sX, S*D*2)
    e("s_mul_i32 s56, s52, 36864")
    e("s_mul_i32 s55, s51, 288")
    e("s_add_u32 s56, s56, s55")
    XR = (16, 20)
    VO = (12, 13); LA = (14, 15)
    for rnd in range(2):
        if rnd == 1: e("v_add_u32 v10, 512, v0")
        else: e("v_mov_b32 v10, v0")
        e("v_mul_u32_u24 v11, 3641, v10")
        e("v_lshrrev_b32 v11, 16, v11")
        e("v_mul_u32_u24 v4, 18, v11")
        e("v_sub_u32 v4, v10, v4")
        e(f"v_mul_u32_u24 v{VO[rnd]}, 1152, v11")
        e(f"v_lshl_add_u32 v{VO[rnd]}, v4, 4, v{VO[rnd]}")
        e(f"v_mul_u32_u24 v{LA[rnd]}, 592, v11")
        e(f"v_lshl_add_u32 v{LA[rnd]}, v4, 5, v{LA[rnd]}")
    e(f"buffer_load_dwordx4 v[{XR[0]}:{XR[0]+3}], v{VO[0]}, s[36:39], s56 offen")
    e(f"s_cmp_ge_u32 s{sWAVE}, 1")
    e("s_cbranch_scc1 p2_nox2")
    e(f"buffer_load_dwordx4 v[{XR[1]}:{XR[1]+3}], v{VO[1]}, s[36:39], s56 offen")
    a.label("p2_nox2")
    e("s_waitcnt lgkmcnt(0)")
    e("s_barrier")
    e("v_and_b32 v5, 15, v1")
    e("v_lshrrev_b32 v6, 4, v1")
    e("v_lshrrev_b32 v7, 1, v5")
    e("v_mul_u32_u24 v8, 1152, v5")
    e(f"v_add_u32 v8, {K2_O}, v8")
    e("v_xor_b32 v9, v6, v7")
    e("v_lshl_add_u32 v10, v9, 4, v8")
    e("v_xor_b32 v9, 4, v9")
    e("v_lshl_add_u32 v11, v9, 4, v8")
    BB = T; AC = T + 16
    def bread(ks):
        for tt in range(2):
            r = BB + (ks%2)*8 + tt*4
            e(f"ds_read_b128 v[{r}:{r+3}], v{10 if ks%2==0 else 11} offset:{tt*18432 + (ks//2)*128}")
    for cls in (0, 1):
        if cls == 0:
            e(f"s_cmp_ge_u32 s{sWAVE}, 1")
            e("s_cbranch_scc1 p2_g1")
        else:
            a.label("p2_g1")
        bread(0)
        for ks in range(18):
            if ks < 17:
                bread(ks+1); e("s_waitcnt lgkmcnt(2)")
            else:
                e("s_waitcnt lgkmcnt(0)")
            for tt in range(2):
                c = "0" if ks == 0 else f"v[{AC+4*tt}:{AC+4*tt+3}]"
                r = BB + (ks%2)*8 + tt*4
                e(f"v_mfma_f32_16x16x32_bf16 v[{AC+4*tt}:{AC+4*tt+3}], v[{WO+4*ks}:{WO+4*ks+3}], v[{r}:{r+3}], {c}")
            if cls == 0:
                for tt in range(2):
                    c = "0" if ks == 0 else f"v[{AC+8+4*tt}:{AC+8+4*tt+3}]"
                    r = BB + (ks%2)*8 + tt*4
                    e(f"v_mfma_f32_16x16x32_bf16 v[{AC+8+4*tt}:{AC+8+4*tt+3}], v[{WO2+4*ks}:{WO2+4*ks+3}], v[{r}:{r+3}], {c}")
        if cls == 0:
            e("s_branch p2_g2")
    a.label("p2_g2")
    e("v_mul_u32_u24 v8, 592, v5")
    e("v_lshl_add_u32 v8, v6, 4, v8")
    e(f"s_lshl_b32 s54, s{sWAVE}, 6")
    e("v_add_u32 v9, s54, v8")
    e("s_nop 7")
    e(f"ds_write_b128 v9, v[{AC}:{AC+3}]")
    e(f"ds_write_b128 v9, v[{AC+4}:{AC+7}] offset:{16*592}")
    e(f"s_cmp_ge_u32 s{sWAVE}, 1")
    e("s_cbranch_scc1 p2_e1")
    e(f"ds_write_b128 v8, v[{AC+8}:{AC+11}] offset:512")
    e(f"ds_write_b128 v8, v[{AC+12}:{AC+15}] offset:{16*592+512}")
    a.label("p2_e1")
    e("s_waitcnt vmcnt(0) lgkmcnt(0)")
    e("s_barrier")
    srd_ws(a, 40, WS_H, WS_H_BYTES)
    for rnd in range(2):
        if rnd == 1:
            e(f"s_cmp_ge_u32 s{sWAVE}, 1")
            e("s_cbranch_scc1 p2_fin")
        e(f"ds_read_b128 v[24:27], v{LA[rnd]}")
        e(f"ds_read_b128 v[28:31], v{LA[rnd]} offset:16")
        X = XR[rnd]
        for q in range(4):
            e(f"v_lshlrev_b32 v{32+2*q}, 16, v{X+q}")
            e(f"v_and_b32 v{33+2*q}, 0xffff0000, v{X+q}")
        e("s_waitcnt lgkmcnt(0)")
        for q in range(8):
            e(f"v_add_f32 v{24+q}, v{24+q}, v{32+q}")
        for q in range(4):
            e(f"v_cvt_pk_bf16_f32 v{40+4*rnd+q}, v{24+2*q}, v{25+2*q}")
        e(f"buffer_store_dwordx4 v[{40+4*rnd}:{43+4*rnd}], v{VO[rnd]}, s[40:43], s56 offen{SC}")
    a.label("p2_fin")

P3_R = 16
P3_B0, P3_RING = 16, 48
P3_ACC = P3_RING + 4*P3_R
P3_TMP = P3_ACC + 80
LDS_CNT = 2*P_BLK
class P3State: pass
def phase3_pre(a, C):
    e = a.e
    st = P3State(); C.p3 = st
    st.soff_base = 0
    e("s_and_b32 s53, s2, 7")
    e("s_lshr_b32 s54, s2, 3")
    e("s_and_b32 s50, s53, 3")
    e("s_lshl_b32 s50, s50, 1")
    e("s_and_b32 s55, s54, 1")
    e("s_add_u32 s50, s50, s55")
    e("s_lshr_b32 s51, s53, 2")
    e("s_lshl_b32 s51, s51, 4")
    e("s_lshr_b32 s55, s54, 1")
    e("s_add_u32 s51, s51, s55")
    e(f"s_mul_i32 s53, s50, {SPLIT_BYTES}")
    e(f"s_add_u32 s53, s53, {WS_W}")
    srd_ws(a, 36, "s53", SPLIT_BYTES)
    e(f"s_mul_i32 s53, s{sWAVE}, 252")
    e(f"s_mul_i32 s54, s{sWAVE}, 234")
    e(f"s_add_u32 s54, s54, 72")
    e(f"s_cmp_lt_u32 s{sWAVE}, 4")
    e(f"s_cselect_b32 s53, s53, s54")
    e(f"s_lshl_b32 s52, s53, 10")
    for n in range(P3_R): p3_issue(a, C, n)

def p3_issue(a, C, n):
    st = C.p3
    while st.soff_base < n // 4:
        a.e("s_add_u32 s52, s52, 4096"); st.soff_base += 1
    r = P3_RING + 4*(n % P3_R)
    a.e(f"buffer_load_dwordx4 v[{r}:{r+3}], v2, s[36:39], s52 offen offset:{(n%4)*1024}")

def lds_wait(a, voff_reg, target, lab):
    e = a.e
    a.label(lab)
    e(f"ds_read_b32 v15, v{voff_reg}")
    e("s_waitcnt lgkmcnt(0)")
    e("v_readfirstlane_b32 s58, v15")
    e(f"s_cmp_ge_u32 s58, {target}")
    e(f"s_cbranch_scc1 {lab}_ok")
    e(f"s_cmp_eq_u32 s{sSPIN}, 0")
    e(f"s_cbranch_scc1 {lab}_ok")
    e(f"s_sub_u32 s{sSPIN}, s{sSPIN}, 1")
    e("s_sleep 1")
    e(f"s_branch {lab}")
    a.label(f"{lab}_ok")

def phase3(a, C):
    e = a.e
    R, B0, RING, ACC, TMP = P3_R, P3_B0, P3_RING, P3_ACC, P3_TMP
    vAe, vAo, vAe2, vAo2, vWA, vWB, vWC, vC0, vCA, vCB = 4, 5, 6, 7, 8, 9, 10, 11, 12, 13
    sC1 = 57
    e(f"s_mul_i32 s53, s51, {P_BLK}")
    e(f"s_add_u32 s53, s53, {WS_H}")
    srd_ws(a, 40, "s53", P_BLK)
    e(f"s_lshl_b32 s54, s50, 5")
    e(f"s_add_u32 s54, s54, s51")
    e(f"s_mul_i32 s53, s54, {P_BLK}")
    e(f"s_add_u32 s53, s53, {WS_P}")
    srd_ws(a, 44, "s53", P_BLK)
    X = ACC
    e("v_lshrrev_b32 v12, 3, v0")
    e("v_and_b32 v13, 7, v0")
    e("v_mul_u32_u24 v14, 1152, v12")
    e("v_lshl_add_u32 v15, v13, 4, v14")
    for i in range(9):
        e(f"buffer_load_dwordx4 v[{X+4*i}:{X+4*i+3}], v15, s[40:43], 0 offen offset:{i*128}")
    e("v_bfe_u32 v4, v12, 1, 3")
    e("v_xor_b32 v4, v4, v13")
    e(f"v_lshl_add_u32 v{TMP+20}, v4, 4, v14")
    e(f"v_mov_b32 v{vCA}, {LDS_CNT}")
    e(f"v_mov_b32 v{vCB}, {LDS_CNT+4}")
    e("v_mov_b32 v14, 0")
    e(f"ds_write_b32 v{vCA}, v14")
    e(f"ds_write_b32 v{vCB}, v14")
    e("v_and_b32 v14, 15, v1")
    e("v_lshrrev_b32 v15, 4, v1")
    e(f"v_lshrrev_b32 v{TMP}, 1, v14")
    e(f"v_mul_u32_u24 v{TMP+1}, 1152, v14")
    e(f"v_xor_b32 v14, v15, v{TMP}")
    e(f"v_lshl_add_u32 v{vAe}, v14, 4, v{TMP+1}")
    e("v_xor_b32 v14, 4, v14")
    e(f"v_lshl_add_u32 v{vAo}, v14, 4, v{TMP+1}")
    e(f"v_add_u32 v{vAe2}, {P_BLK}, v{vAe}")
    e(f"v_add_u32 v{vAo2}, {P_BLK}, v{vAo}")
    e(f"s_mul_i32 s53, s{sWAVE}, 9")
    e(f"v_add_u32 v{TMP+1}, {P_BLK}, v{TMP+1}")
    e(f"v_add_u32 v14, s53, v15")
    e(f"v_xor_b32 v14, v14, v{TMP}")
    e(f"v_lshl_add_u32 v{vWA}, v14, 4, v{TMP+1}")
    e(f"s_add_u32 s53, s53, 4")
    e(f"v_add_u32 v14, s53, v15")
    e(f"v_xor_b32 v14, v14, v{TMP}")
    e(f"v_lshl_add_u32 v{vWB}, v14, 4, v{TMP+1}")
    e(f"s_add_u32 s53, s53, 4")
    e(f"v_xor_b32 v14, s53, v{TMP}")
    e(f"v_lshl_add_u32 v14, v14, 4, v{TMP+1}")
    e(f"v_lshl_add_u32 v{vWC}, v15, 2, v14")
    e(f"v_mov_b32 v{vC0}, {hex(f2u(GC0))}")
    e(f"s_mov_b32 s{sC1}, {hex(f2u(GC1))}")
    e("s_waitcnt vmcnt(0)")
    stamp(a, C, 7)
    ln_rows(e, X, TMP)
    for i in range(9):
        e(f"ds_write_b128 v{TMP+20}, v[{X+4*i}:{X+4*i+3}] offset:{i*128}")
    e("s_waitcnt lgkmcnt(0)")
    e("s_barrier")
    stamp(a, C, 8)

    def bread(buf, ks, ve, vo):
        for tt in range(4):
            r = B0 + buf*16 + tt*4
            v = ve if ks % 2 == 0 else vo
            e(f"ds_read_b128 v[{r}:{r+3}], v{v} offset:{tt*18432 + (ks//2)*128}")

    def gemm_group(n0, nu, ve, vo, total, acc0=0, sync=None):
        if sync: sync(0)
        bread(0, 0, ve, vo)
        n = n0
        for ks in range(18):
            cur = ks % 2
            if ks < 17:
                if sync: sync(ks+1)
                bread(1-cur, ks+1, ve, vo)
                lg = 4
            else:
                lg = 0
            for u in range(nu):
                slot = n % R
                outstanding_after = min(total - 1 - n, R - 1)
                w = f"s_waitcnt vmcnt({outstanding_after})"
                if u == 0: w += f" lgkmcnt({lg})"
                e(w)
                ra = RING + 4*slot
                for tt in range(4):
                    acc = ACC + ((acc0+u)*4+tt)*4
                    rb_ = B0 + cur*16 + tt*4
                    c = "0" if ks == 0 else f"v[{acc}:{acc+3}]"
                    e(f"v_mfma_f32_16x16x32_bf16 v[{acc}:{acc+3}], v[{ra}:{ra+3}], v[{rb_}:{rb_+3}], {c}")
                if n + R < total:
                    p3_issue(a, C, n + R)
                n += 1
        return n

    def gelu(us, vaddr, width):
        for tt in range(4):
            els = [(u, r) for u in us for r in range(2)]
            nE = len(els)
            T1, T2 = TMP, TMP + 8
            Dw = TMP + 16 + (tt%2)*4
            G = lambda u, r: ACC + (u*4+tt)*4 + r
            Uu = lambda u, r: ACC + (u*4+tt)*4 + 2 + r
            for i, (u, r) in enumerate(els): e(f"v_mul_f32 v{T1+i}, v{G(u,r)}, v{G(u,r)}")
            for i, (u, r) in enumerate(els): e(f"v_fma_f32 v{T1+i}, v{T1+i}, s{sC1}, v{vC0}")
            for i, (u, r) in enumerate(els): e(f"v_mul_f32 v{T1+i}, v{T1+i}, v{G(u,r)}")
            for i, (u, r) in enumerate(els): e(f"v_exp_f32 v{T1+i}, v{T1+i}")
            for i, (u, r) in enumerate(els): e(f"v_mul_f32 v{T2+i}, v{G(u,r)}, v{Uu(u,r)}")
            for i, (u, r) in enumerate(els): e(f"v_add_f32 v{T1+i}, 1.0, v{T1+i}")
            for i, (u, r) in enumerate(els): e(f"v_rcp_f32 v{T1+i}, v{T1+i}")
            if nE < 4: e("s_nop 0")
            for i, (u, r) in enumerate(els): e(f"v_mul_f32 v{T2+i}, v{T2+i}, v{T1+i}")
            for k in range(nE//2): e(f"v_cvt_pk_bf16_f32 v{Dw+k}, v{T2+2*k}, v{T2+2*k+1}")
            if width == 4: e(f"ds_write_b128 v{vaddr}, v[{Dw}:{Dw+3}] offset:{tt*18432}")
            else: e(f"ds_write_b32 v{vaddr}, v{Dw} offset:{tt*18432}")

    BIG = 10**9
    n = gemm_group(0, 4, vAe, vAo, BIG)
    e("s_nop 7")
    gelu([0,1,2,3], vWA, 4)
    n = gemm_group(n, 5, vAe, vAo, BIG)
    e("s_nop 7")
    gelu([0,1,2,3], vWB, 4)
    gelu([4], vWC, 1)
    e("s_waitcnt lgkmcnt(0)")
    e(f"s_cmp_lt_u32 s{sWAVE}, 4")
    e(f"s_cselect_b32 s58, 0, 4")
    e(f"s_add_u32 s58, s58, {LDS_CNT}")
    e("v_mov_b32 v14, s58")
    e("v_mov_b32 v15, 1")
    e("s_mov_b64 exec, 1")
    e("ds_add_u32 v14, v15")
    e("s_mov_b64 exec, -1")
    stamp(a, C, 9)
    assert n == 162
    saved = st_save = C.p3.soff_base
    e(f"s_cmp_ge_u32 s{sWAVE}, 4")
    e("s_cbranch_scc1 p3_c1")
    for cls in (0, 1):
        if cls == 1:
            a.label("p3_c1")
            C.p3.soff_base = saved
        total = 252 if cls == 0 else 234
        def sync0(ks, cls=cls):
            if ks == 0: lds_wait(a, vCA, 4, f"p3_wa{cls}")
            if ks == 9: lds_wait(a, vCB, 4, f"p3_wb{cls}")
        n = gemm_group(162, 2, vAe2, vAo2, total, acc0=0, sync=sync0)
        e(f"s_lshl_b32 s53, s{sWAVE}, 13")
        e("s_nop 7")
        for tt in range(4):
            Dw = TMP + tt*4
            for r in range(4):
                e(f"v_cvt_pk_bf16_f32 v{Dw+r}, v{ACC+(0*4+tt)*4+r}, v{ACC+(1*4+tt)*4+r}")
            e(f"buffer_store_dwordx4 v[{Dw}:{Dw+3}], v2, s[44:47], s53 offen offset:{tt*1024}{SC}")
        nst0 = 4
        nt2 = 3 if cls == 0 else 2
        C.extra_vm = nst0
        def gemm_group2(n0, nu, total):
            bread(0, 0, vAe2, vAo2)
            n = n0
            for ks in range(18):
                cur = ks % 2
                if ks < 17:
                    bread(1-cur, ks+1, vAe2, vAo2); lg = 4
                else: lg = 0
                for u in range(nu):
                    slot = n % R
                    after = min(total - 1 - n, R - 1)
                    if n <= n0 + R - 1: after += nst0
                    w = f"s_waitcnt vmcnt({after})"
                    if u == 0: w += f" lgkmcnt({lg})"
                    e(w)
                    ra = RING + 4*slot
                    for tt in range(4):
                        acc = ACC + ((2+u)*4+tt)*4
                        rb_ = B0 + cur*16 + tt*4
                        c = "0" if ks == 0 else f"v[{acc}:{acc+3}]"
                        e(f"v_mfma_f32_16x16x32_bf16 v[{acc}:{acc+3}], v[{ra}:{ra+3}], v[{rb_}:{rb_+3}], {c}")
                    if n + R < total:
                        p3_issue(a, C, n + R)
                    n += 1
            return n
        n = gemm_group2(n, nt2, total)
        assert n == total
        e("s_nop 7")
        e(f"s_add_u32 s53, s53, 4096")
        for tt in range(4):
            Dw = TMP + 16 + (tt%2)*4 if False else TMP + tt*4
            for r in range(4):
                e(f"v_cvt_pk_bf16_f32 v{Dw+r}, v{ACC+(2*4+tt)*4+r}, v{ACC+(3*4+tt)*4+r}")
            e(f"buffer_store_dwordx4 v[{Dw}:{Dw+3}], v2, s[44:47], s53 offen offset:{tt*1024}{SC}")
        if cls == 0:
            e(f"s_lshl_b32 s53, s{sWAVE}, 11")
            e(f"s_add_u32 s53, s53, 65536")
            for tt in range(4):
                for rp in range(2):
                    Dw = TMP + 16 + tt*2 + rp
                    e(f"v_cvt_pk_bf16_f32 v{Dw}, v{ACC+(4*4+tt)*4+2*rp}, v{ACC+(4*4+tt)*4+2*rp+1}")
                    e(f"buffer_store_dword v{Dw}, v3, s[44:47], s53 offen offset:{(tt*2+rp)*256}{SC}")
            e("s_branch p3_end")
    a.label("p3_end")

def phase4(a, C):
    e = a.e
    srd_ws(a, 36, WS_P, WS_P_BYTES)
    srd_ws(a, 40, WS_H, WS_H_BYTES)
    srd(a, 44, sOUT, S*D*2)
    e(f"s_cmp_ge_u32 s{sWAVE}, 4")
    e("s_cbranch_scc1 p4_s")
    e(f"s_mul_i32 s53, s51, {P_BLK}")
    e("s_lshl_b32 s54, s50, 13")
    e("s_add_u32 s53, s53, s54")
    e(f"s_lshl_b32 s54, s{sWAVE}, 10")
    e("s_add_u32 s53, s53, s54")
    e("v_add_u32 v4, 4096, v2")
    for src in range(8):
        e(f"buffer_load_dwordx4 v[{16+8*src}:{19+8*src}], v2, s[36:39], s53 offen")
        e(f"buffer_load_dwordx4 v[{20+8*src}:{23+8*src}], v4, s[36:39], s53 offen")
        if src < 7: e(f"s_add_u32 s53, s53, {32*P_BLK}")
    e("v_and_b32 v5, 15, v1")
    e("v_lshrrev_b32 v6, 4, v1")
    e("v_mul_u32_u24 v7, 1152, v5")
    e("v_lshl_add_u32 v7, v6, 5, v7")
    e("s_lshl_b32 s54, s51, 6")
    e(f"s_lshl_b32 s55, s{sWAVE}, 4")
    e("s_add_u32 s54, s54, s55")
    e("s_mul_i32 s54, s54, 1152")
    e("s_lshl_b32 s55, s50, 7")
    e("s_add_u32 s54, s54, s55")
    e("buffer_load_dwordx4 v[80:83], v7, s[40:43], s54 offen")
    e("buffer_load_dwordx4 v[84:87], v7, s[40:43], s54 offen offset:16")
    e("s_waitcnt vmcnt(0)")
    for q in range(8):
        e(f"v_lshlrev_b32 v{88+2*q}, 16, v{80+q}")
        e(f"v_and_b32 v{89+2*q}, 0xffff0000, v{80+q}")
    for src in range(8):
        for p in range(2):
            for r in range(4):
                x = 16 + 8*src + 4*p + r
                e(f"v_lshlrev_b32 v{104+2*(r%2)}, 16, v{x}")
                e(f"v_and_b32 v{105+2*(r%2)}, 0xffff0000, v{x}")
                e(f"v_add_f32 v{88+4*r+2*p}, v{88+4*r+2*p}, v{104+2*(r%2)}")
                e(f"v_add_f32 v{89+4*r+2*p}, v{89+4*r+2*p}, v{105+2*(r%2)}")
    for q in range(8):
        e(f"v_cvt_pk_bf16_f32 v{16+q}, v{88+2*q}, v{89+2*q}")
    e("buffer_store_dwordx4 v[16:19], v7, s[44:47], s54 offen")
    e("buffer_store_dwordx4 v[20:23], v7, s[44:47], s54 offen offset:16")
    e("s_branch p4_end")
    a.label("p4_s")
    e(f"s_cmp_ge_u32 s{sWAVE}, 5")
    e("s_cbranch_scc1 p4_end")
    e(f"s_mul_i32 s53, s51, {P_BLK}")
    e("s_lshl_b32 s54, s50, 8")
    e("s_add_u32 s53, s53, s54")
    e("s_add_u32 s53, s53, 65536")
    e("v_add_u32 v4, 4096, v3")
    for src in range(8):
        for u in range(4):
            e(f"buffer_load_dword v{16+4*src+u}, v{3 if u < 2 else 4}, s[36:39], s53 offen offset:{(u%2)*2048}")
        if src < 7: e(f"s_add_u32 s53, s53, {32*P_BLK}")
    e("v_and_b32 v5, 15, v1")
    e("v_lshrrev_b32 v6, 4, v1")
    e("v_mul_u32_u24 v7, 1152, v5")
    e("v_lshl_add_u32 v7, v6, 5, v7")
    e("s_lshl_b32 s54, s51, 6")
    e("s_lshr_b32 s55, s50, 1")
    e("s_lshl_b32 s55, s55, 4")
    e("s_add_u32 s54, s54, s55")
    e("s_mul_i32 s54, s54, 1152")
    e("s_and_b32 s55, s50, 1")
    e("s_lshl_b32 s55, s55, 4")
    e("s_add_u32 s54, s54, s55")
    e("s_add_u32 s54, s54, 1024")
    e("buffer_load_dwordx4 v[80:83], v7, s[40:43], s54 offen")
    e("s_waitcnt vmcnt(0)")
    for q in range(4):
        e(f"v_lshlrev_b32 v{88+2*q}, 16, v{80+q}")
        e(f"v_and_b32 v{89+2*q}, 0xffff0000, v{80+q}")
    for src in range(8):
        for u in range(4):
            x = 16+4*src+u
            e(f"v_lshlrev_b32 v{104+2*(u%2)}, 16, v{x}")
            e(f"v_and_b32 v{105+2*(u%2)}, 0xffff0000, v{x}")
            e(f"v_add_f32 v{88+u}, v{88+u}, v{104+2*(u%2)}")
            e(f"v_add_f32 v{92+u}, v{92+u}, v{105+2*(u%2)}")
    for q in range(4):
        e(f"v_cvt_pk_bf16_f32 v{16+q}, v{88+2*q}, v{89+2*q}")
    e("buffer_store_dwordx4 v[16:19], v7, s[44:47], s54 offen")
    a.label("p4_end")

LDS_TOTAL = 2*P_BLK + 256
NAME = "sequential_preLN__linear_kernel_hedgehog__geglu_ffn__prompt_kernel"
def build(fname, ts=False, spin=2000000, codepf=True):
    C = Ctx(ts)
    a = Asm()
    a(HEADER.rstrip())
    a(f"; @launch grid=(256,1,1) block=(512,1,1) lds={LDS_TOTAL}")
    a('.amdgcn_target "amdgcn-amd-amdhsa--gfx950"')
    a(".text")
    kernel_begin(a, NAME)
    e = a.e
    e("s_cmp_ge_u32 s2, 256")
    e("s_cbranch_scc1 k_done")
    stamp(a, C, 0)
    e("s_load_dwordx8 s[4:11], s[0:1], 0")
    e("s_load_dwordx8 s[12:19], s[0:1], 32")
    e("s_load_dwordx4 s[20:23], s[0:1], 64")
    e("s_load_dwordx2 s[24:25], s[0:1], 80")
    e("v_lshrrev_b32 v4, 6, v0")
    e("v_and_b32 v1, 63, v0")
    e(f"v_readfirstlane_b32 s{sWAVE}, v4")
    e("v_lshlrev_b32 v2, 4, v1")
    e("v_lshlrev_b32 v3, 2, v1")
    e(f"s_mov_b32 s{sSPIN}, {spin}")
    e("s_waitcnt lgkmcnt(0)")
    if codepf:
        e(f"s_cmp_lt_u32 s{sWAVE}, 5")
        e("s_cbranch_scc1 nocpf")
        e("s_getpc_b64 s[30:31]")
        a.label("cpf_pc")
        e(f"s_sub_u32 s29, s{sWAVE}, 5")
        e("s_mul_i32 s29, s29, 0x6000")
        e("v_lshlrev_b32 v4, 7, v1")
        e("v_add_u32 v4, s29, v4")
        e("s_mov_b32 s29, k_code_end-cpf_pc")
        for i in range(3):
            e("v_cmp_gt_u32 vcc, s29, v4")
            e("s_and_saveexec_b64 s[32:33], vcc")
            e(f"s_cbranch_execz cpf_skip{i}")
            e(f"global_load_dword v{5+i}, v4, s[30:31]")
            a.label(f"cpf_skip{i}")
            e("s_mov_b64 exec, s[32:33]")
            e("v_add_u32 v4, 0x2000, v4")
        a.label("nocpf")
    e(f"s_add_u32 s30, s{sWS}, {hex(WS_TAG)}")
    e(f"s_addc_u32 s31, s{sWS+1}, 0")
    e(f"s_load_dword s{sTAG}, s[30:31], 0")
    phase0(a, C)
    e("s_waitcnt lgkmcnt(0)")
    e(f"s_mul_i32 s{sTAG}, s{sTAG}, 1664525")
    e(f"s_add_u32 s{sTAG}, s{sTAG}, 1013904223")
    stamp(a, C, 1)
    signal(a, 0, "b0_s")
    e(f"s_cmp_eq_u32 s{sWAVE}, 0")
    e("s_cbranch_scc1 b0_poll")
    e(f"s_sub_u32 s56, s{sWAVE}, 1")
    e("s_lshl_b32 s56, s56, 8")
    e("s_add_u32 s56, s56, s2")
    e("s_add_u32 s56, s56, 1000")
    e("s_cmp_ge_u32 s56, 2592")
    e("s_cbranch_scc1 b0_join")
    pack_task(a, "pk1", 56)
    e("s_branch b0_join")
    a.label("b0_poll")
    poll_all(a, 0, "b0_p")
    a.label("b0_join")
    e("s_barrier")
    stamp(a, C, 2)
    phase1(a, C)
    stamp(a, C, 3)
    signal(a, 1, "b1_s")
    phase2_pre(a, C)
    e(f"s_cmp_lg_u32 s{sWAVE}, 0")
    e("s_cbranch_scc1 b1_join")
    poll_all(a, 1, "b1_p")
    e("s_cmp_lg_u32 s2, 0")
    e("s_cbranch_scc1 b1_join")
    srd_ws(a, 32, WS_TAG, 4)
    e(f"v_mov_b32 v4, s{sTAG}")
    e("v_mov_b32 v5, 0")
    e("s_mov_b64 exec, 1")
    e(f"buffer_store_dword v4, v5, s[32:35], 0 offen{SC}")
    e("s_mov_b64 exec, -1")
    a.label("b1_join")
    e("s_barrier")
    stamp(a, C, 4)
    phase2(a, C)
    stamp(a, C, 5)
    signal(a, 2, "b2_s")
    phase3_pre(a, C)
    e(f"s_cmp_lg_u32 s{sWAVE}, 0")
    e("s_cbranch_scc1 b2_join")
    e("s_lshr_b32 s53, s51, 2")
    e("s_and_b32 s54, s51, 3")
    e("s_lshl_b32 s54, s54, 6")
    e("s_add_u32 s53, s53, s54")
    poll_list(a, 2, 53, 8, 8, "b2_p")
    a.label("b2_join")
    e("s_barrier")
    stamp(a, C, 6)
    phase3(a, C)
    stamp(a, C, 10)
    signal(a, 3, "b3_s")
    e(f"s_cmp_lg_u32 s{sWAVE}, 0")
    e("s_cbranch_scc1 b3_join")
    srd_ws(a, 32, WS_FL + 3*256*FL_STRIDE, 256*FL_STRIDE)
    e("s_lshr_b32 s53, s51, 4")
    e("s_lshl_b32 s53, s53, 2")
    e("s_and_b32 s54, s51, 15")
    e("s_lshl_b32 s54, s54, 4")
    e("s_add_u32 s53, s53, s54")
    e("s_lshl_b32 s53, s53, 7")
    e("v_lshrrev_b32 v4, 1, v1")
    e("v_and_b32 v5, 1, v1")
    e("v_lshl_add_u32 v4, v5, 3, v4")
    e("v_lshlrev_b32 v4, 7, v4")
    e("s_mov_b64 exec, 0xff")
    a.label("b3_p")
    e(f"buffer_load_dword v8, v4, s[32:35], s53 offen{SC}")
    e("s_waitcnt vmcnt(0)")
    e(f"v_cmp_ne_u32 vcc, s{sTAG}, v8")
    e(f"s_cmp_eq_u32 s{sSPIN}, 0")
    e(f"s_cbranch_scc1 b3_p_x")
    e(f"s_sub_u32 s{sSPIN}, s{sSPIN}, 1")
    e(f"s_cbranch_vccnz b3_p")
    a.label("b3_p_x")
    e("s_mov_b64 exec, -1")
    a.label("b3_join")
    e("s_barrier")
    stamp(a, C, 11)
    phase4(a, C)
    if ts:
        e("s_waitcnt vmcnt(0)")
        stamp(a, C, 12)
        e("s_waitcnt lgkmcnt(0)")
        srd_ws(a, 32, WS_TS, 0x100000)
        e("s_lshl_b32 s53, s2, 3")
        e(f"s_add_u32 s53, s53, s{sWAVE}")
        e("s_lshl_b32 s53, s53, 6")
        for i in range(13): e(f"v_mov_b32 v{16+i}, s{60+2*i}")
        e("v_mov_b32 v4, 0")
        e("s_mov_b64 exec, 1")
        for q in range(3):
            e(f"buffer_store_dwordx4 v[{16+4*q}:{19+4*q}], v4, s[32:35], s53 offen offset:{16*q}")
        e("buffer_store_dword v28, v4, s[32:35], s53 offen offset:48")
    a.label("k_done")
    e("s_endpgm")
    short_table(a, "otab", o_sigma_to_he())
    perm_table(a, "ftab")
    a.label("k_code_end")
    a('.section .rodata,"a"')
    a(".p2align 6")
    a(kernel_desc(NAME, 256, 102, 256))
    open(fname, "w").write(a.text())

if __name__ == "__main__":
    build("mega_ts.s", ts=True, spin=20000)
    build("mega.s", ts=False)
    build("mega_nopf.s", ts=False, codepf=False)
```

```python
S, D, H, DH, F = 2048, 576, 32, 18, 4608
WS_W    = 0x0000000
SPLIT_BYTES = 1944*1024
WS_W_BYTES = 8*SPLIT_BYTES
WS_H    = 0x1000000
WS_H_BYTES = S*D*2
WS_P    = 0x1400000
P_BLK = 73728
WS_P_BYTES = 8*32*P_BLK
WS_TS   = 0x8000000

def wavebase(w):
    return (w*252 if w < 4 else 4*252 + (w-4)*234)*1024
def nt_of(w):
    return 5 if w < 4 else 4

def sigma_to_f():
    out = []
    for s in range(576):
        w, rem = divmod(s, 72)
        if rem < 32:
            gp, i, r = rem//8, (rem%8)//2, rem%2
        elif rem < 64:
            gp, i, r = (rem-32)//8, 4+((rem-32)%8)//2, rem%2
        else:
            gp, i, r = (rem-64)//2, 8, rem%2
        mu = 9*w+i
        b, u = divmod(mu, 8)
        out.append(64*b + 8*(2*gp+r) + u)
    assert sorted(out) == list(range(576))
    return out

WS_XNF  = 0x2600000
XNF_BYTES = S*D*2
WS_WPF  = 0x2900000
WPF_HEAD = 72*1024
WPF_BYTES = 32*WPF_HEAD
WS_WOF  = 0x2C00000
WOF_BYTES = 36*18*1024
WS_KV   = 0x2D00000
KV_HEAD = 20*36*4
KV_BYTES = 32*KV_HEAD
WS_PHIQ = 0x2E00000
PHIQ_BLK = 2304
PHIQ_BYTES = 64*32*PHIQ_BLK

def drow32(r, half):
    return (r//4)*8 + 4*half + r%4
def kslot_d(s, half, j):
    return 16*s + 8*(j//4) + 4*half + (j%4)
def wpf_row(tile, m):
    half = (m>>2)&1; r = (m>>3)*4 + (m&3)
    if r <= 8: return ('pq' if tile == 0 else 'pk', 9*half + r)
    if tile == 0: return ('v', 9*half + (r-9))
    if r <= 10: return ('v', 9*half + 7 + (r-9))
    return (None, 0)
def o_sigma_to_he():
    out = [None]*576
    for w in range(8):
        for half in range(2):
            for q in range(18):
                p, i = divmod(q, 9)
                if q < 16: dw = (9*w + 4*half + q//4)*4 + q%4
                else: dw = (9*w+8)*4 + 2*half + (q-16)
                for lo in range(2):
                    out[2*dw+lo] = (4*w + 2*p + lo)*18 + 9*half + i
    assert sorted(out) == list(range(576))
    return out


def w2_frag_index(w, i, ks):
    if i < 2: return 162 + ks*2 + i
    nt2 = 3 if w < 4 else 2
    return 162 + 36 + ks*nt2 + (i-2)
WS_FL   = 0x3400000
FL_STRIDE = 128
WS_TAG  = 0x3500000


def mu_bu(w, i):
    if i < 4: return divmod(4*w + i, 8)
    b, u = divmod(5*w + (i-4), 8)
    return b + 4, u
def sigma_to_f3():
    out = []
    for s in range(576):
        w, rem = divmod(s, 72)
        if rem < 32: gp, i, r = rem//8, (rem%8)//2, rem%2
        elif rem < 64: gp, i, r = (rem-32)//8, 4+((rem-32)%8)//2, rem%2
        else: gp, i, r = (rem-64)//2, 8, rem%2
        b, u = mu_bu(w, i)
        out.append(64*b + 8*(2*gp+r) + u)
    assert sorted(out) == list(range(576))
    return out


def w2_frag_index4(w, i, ks):
    nt2 = 3 if w < 4 else 2
    if i < 2:
        return 162 + (2*ks + i if ks < 9 else 18 + 9*nt2 + 2*(ks-9) + i)
    return 162 + (18 + nt2*ks + (i-2) if ks < 9 else 36 + 9*nt2 + nt2*(ks-9) + (i-2))
```

```python
from asmlib import *
from common import *
from gen_ffn import magic, sdiv, f2u, GC0, GC1, perm_table
from gen_attn import ln_rows, short_table, softmax9, LOG2E
import gen_attn

sX, sWQKV, sWPHI, sWO, sWG, sWU, sWD, sOUT, sDBG, sWS = 4, 6, 8, 10, 14, 16, 18, 20, 22, 24
sWAVE, sTAG, sSPIN = 26, 27, 28
SC = " sc0 sc1"
FLS = 32
import math
FLSH = int(math.log2(FLS))

def srd(a, d, p, nbytes):
    a.e(f"s_mov_b32 s{d}, s{p}"); a.e(f"s_mov_b32 s{d+1}, s{p+1}")
    a.e(f"s_mov_b32 s{d+2}, {hex(nbytes)}"); a.e(f"s_mov_b32 s{d+3}, 0x20000")
def srd_ws(a, d, off, nbytes):
    o = hex(off) if isinstance(off, int) else off
    a.e(f"s_add_u32 s{d}, s{sWS}, {o}"); a.e(f"s_addc_u32 s{d+1}, s{sWS+1}, 0")
    a.e(f"s_mov_b32 s{d+2}, {hex(nbytes)}"); a.e(f"s_mov_b32 s{d+3}, 0x20000")

class Ctx:
    def __init__(self, ts, prio=0, order='B'): self.ts = ts; self.nst = 0; self.prio = prio; self.order = order

def stamp(a, C, i):
    if C.ts:
        r = 60+2*i if i < 13 else 96+2*(i-13)
        a.e(f"s_memrealtime s[{r}:{r+1}]")

def signal(a, b, lab, arr_stride_idx="s2"):
    e = a.e
    e("s_waitcnt vmcnt(0) lgkmcnt(0)")
    e("s_barrier")
    e(f"s_cmp_lg_u32 s{sWAVE}, 0")
    e(f"s_cbranch_scc1 {lab}")
    srd_ws(a, 32, WS_FL + b*256*FL_STRIDE, 256*FL_STRIDE)
    e(f"s_lshl_b32 s29, s2, {FLSH}")
    e(f"v_mov_b32 v4, s{sTAG}")
    e("v_mov_b32 v5, 0")
    e("s_mov_b64 exec, 1")
    e(f"buffer_store_dword v4, v5, s[32:35], s29 offen{SC}")
    e("s_mov_b64 exec, -1")
    a.label(lab)

SLEEP = 2
def poll_all(a, b, lab):
    sleep = SLEEP
    e = a.e
    srd_ws(a, 32, WS_FL + b*256*FL_STRIDE, 256*FL_STRIDE)
    e(f"v_lshlrev_b32 v4, {FLSH}, v1")
    for q in range(1, 4):
        e(f"v_add_u32 v{4+q}, {q*64*FLS}, v4")
    a.label(lab)
    for q in range(4):
        e(f"buffer_load_dword v{8+q}, v{4+q}, s[32:35], 0 offen{SC}")
    e("s_waitcnt vmcnt(0)")
    for q in range(4):
        e(f"v_xor_b32 v{8+q}, s{sTAG}, v{8+q}")
    e("v_or_b32 v8, v8, v9")
    e("v_or3_b32 v8, v8, v10, v11")
    e("v_cmp_ne_u32 vcc, 0, v8")
    e(f"s_cbranch_vccz {lab}_x")
    e(f"s_cmp_eq_u32 s{sSPIN}, 0")
    e(f"s_cbranch_scc1 {lab}_x")
    e(f"s_sub_u32 s{sSPIN}, s{sSPIN}, 1")
    if sleep: e(f"s_sleep {sleep}")
    e(f"s_branch {lab}")
    a.label(f"{lab}_x")

def poll_few(a, lab, voff, soff, nlanes, r0=8, r1=9):
    e = a.e
    e(f"s_mov_b64 exec, {hex((1<<nlanes)-1)}")
    e(f"buffer_load_dword v{r0}, v{voff}, s[32:35], s{soff} offen{SC}")
    a.label(lab)
    e(f"buffer_load_dword v{r1}, v{voff}, s[32:35], s{soff} offen{SC}")
    e("s_waitcnt vmcnt(1)")
    e(f"v_cmp_ne_u32 vcc, s{sTAG}, v{r0}")
    e(f"s_cbranch_vccz {lab}_x")
    e(f"buffer_load_dword v{r0}, v{voff}, s[32:35], s{soff} offen{SC}")
    e("s_waitcnt vmcnt(1)")
    e(f"v_cmp_ne_u32 vcc, s{sTAG}, v{r1}")
    e(f"s_cbranch_vccz {lab}_x")
    e(f"s_cmp_eq_u32 s{sSPIN}, 0")
    e(f"s_cbranch_scc1 {lab}_x")
    e(f"s_sub_u32 s{sSPIN}, s{sSPIN}, 1")
    e(f"s_branch {lab}")
    a.label(f"{lab}_x")
    e("s_waitcnt vmcnt(0)")
    e("s_mov_b64 exec, -1")

def poll_list(a, b, sbase, n, stride_wg, lab):
    e = a.e
    srd_ws(a, 32, WS_FL + b*256*FL_STRIDE, 256*FL_STRIDE)
    e(f"v_mul_u32_u24 v4, {stride_wg*FLS}, v1")
    e(f"s_lshl_b32 s29, s{sbase}, {FLSH}")
    poll_few(a, lab, 4, 29, n)

def pack_w1_issue(a, sT, L, vt, st=80, nt=True):
    e = a.e
    ntf = " nt" if nt else ""
    sj, sb, sks, s0, s1 = [st+i for i in range(5)]
    sstr = st+8
    sdiv(a, f"s{sj}", f"s{sT}", 162)
    e(f"s_mul_i32 s{s0}, s{sj}, 162")
    e(f"s_sub_u32 s{s0}, s{sT}, s{s0}")
    sdiv(a, f"s{sb}", f"s{s0}", 18)
    e(f"s_mul_i32 s{s1}, s{sb}, 18")
    e(f"s_sub_u32 s{sks}, s{s0}, s{s1}")
    e(f"s_mul_i32 s{s0}, s{sks}, 294912")
    e(f"s_mul_i32 s{s1}, s{sj}, 1152")
    e(f"s_add_u32 s{s0}, s{s0}, s{s1}")
    e(f"s_lshl_b32 s{s1}, s{sb}, 7")
    e(f"s_add_u32 s{s0}, s{s0}, s{s1}")
    va = vt
    t0, t1, t2, t3 = vt+2, vt+3, vt+4, vt+5
    e(f"v_lshrrev_b32 v{t0}, 4, v1")
    e(f"v_mul_u32_u24 v{t0}, 0x12000, v{t0}")
    e(f"v_bfe_u32 v{t1}, v1, 2, 2")
    e(f"v_lshlrev_b32 v{t1}, 5, v{t1}")
    e(f"v_and_b32 v{t2}, 1, v1")
    e(f"v_lshlrev_b32 v{t2}, 4, v{t2}")
    e(f"v_add3_u32 v{t0}, v{t0}, v{t1}, v{t2}")
    e(f"v_add_u32 v{t0}, s{s0}, v{t0}")
    e(f"v_and_b32 v{t1}, 2, v1")
    e(f"v_cmp_eq_u32 vcc, 0, v{t1}")
    e(f"v_mov_b32 v{t2}, s{sWU}")
    e(f"v_mov_b32 v{t3}, s{sWG}")
    e(f"v_cndmask_b32 v{va}, v{t2}, v{t3}, vcc")
    e(f"v_mov_b32 v{t2}, s{sWU+1}")
    e(f"v_mov_b32 v{t3}, s{sWG+1}")
    e(f"v_cndmask_b32 v{va+1}, v{t2}, v{t3}, vcc")
    e(f"v_add_co_u32 v{va}, vcc, v{va}, v{t0}")
    e(f"s_mov_b32 s{sstr}, 9216")
    e(f"s_mov_b32 s{sstr+1}, 0")
    e(f"v_addc_co_u32 v{va+1}, vcc, 0, v{va+1}, vcc")
    for jj in range(8):
        e(f"global_load_dwordx4 v[{L+4*jj}:{L+4*jj+3}], v[{va}:{va+1}], off{ntf}")
        if jj < 7:
            e(f"v_lshl_add_u64 v[{va}:{va+1}], v[{va}:{va+1}], 0, s[{sstr}:{sstr+1}]")

def pack_w1_finish(a, lab, L, O, st=80, sd=36, sT=None):
    e = a.e
    srd_ws(a, sd, WS_W, WS_W_BYTES)
    sj, sb, sks, s0, s1, s2, s3 = [st+i for i in range(7)]
    if sT is not None:
        sdiv(a, f"s{sj}", f"s{sT}", 162)
        e(f"s_mul_i32 s{s0}, s{sj}, 162")
        e(f"s_sub_u32 s{s0}, s{sT}, s{s0}")
        sdiv(a, f"s{sb}", f"s{s0}", 18)
        e(f"s_mul_i32 s{s1}, s{sb}, 18")
        e(f"s_sub_u32 s{sks}, s{s0}, s{s1}")
    ssel = st+10
    e(f"s_mov_b32 s{ssel}, 0x05040100")
    e(f"s_mov_b32 s{ssel+1}, 0x07060302")
    e(f"s_mul_i32 s{s3}, s{sj}, {SPLIT_BYTES}")
    for u in range(8):
        for q in range(4):
            e(f"v_perm_b32 v{O+4*u+q}, v{L+4*(2*q+1)+u//2}, v{L+4*(2*q)+u//2}, s{ssel+(u&1)}")
    for u in range(8):
        e(f"s_lshl_b32 s{s0}, s{sb}, 3")
        e(f"s_add_u32 s{s0}, s{s0}, {u}")
        e(f"s_lshr_b32 s{s1}, s{s0}, 2")
        e(f"s_and_b32 s{s2}, s{s0}, 3")
        e(f"s_lshl_b32 s{st+7}, s{sks}, 2")
        e(f"s_add_u32 s{s2}, s{s2}, s{st+7}")
        e(f"s_sub_u32 s{s0}, s{s0}, 32")
        e(f"s_mul_i32 s{st+7}, s{s0}, 52")
        e(f"s_lshr_b32 s{st+7}, s{st+7}, 8")
        e(f"s_mul_i32 s{st+9}, s{st+7}, 5")
        e(f"s_sub_u32 s{s0}, s{s0}, s{st+9}")
        e(f"s_mul_i32 s{st+9}, s{sks}, 5")
        e(f"s_add_u32 s{s0}, s{s0}, s{st+9}")
        e(f"s_add_u32 s{s0}, s{s0}, 72")
        e(f"s_cmp_lt_u32 s{sb}, 4")
        e(f"s_cselect_b32 s{s1}, s{s1}, s{st+7}")
        e(f"s_cselect_b32 s{s0}, s{s2}, s{s0}")
        e(f"s_mul_i32 s{s2}, s{s1}, 234")
        e(f"s_add_u32 s{s2}, s{s2}, 72")
        e(f"s_cmp_lt_u32 s{s1}, 4")
        e(f"s_mul_i32 s{s1}, s{s1}, 252")
        e(f"s_cselect_b32 s{s2}, s{s1}, s{s2}")
        e(f"s_add_u32 s{s0}, s{s0}, s{s2}")
        e(f"s_lshl_b32 s{s0}, s{s0}, 10")
        e(f"s_add_u32 s{s0}, s{s0}, s{s3}")
        e(f"buffer_store_dwordx4 v[{O+4*u}:{O+4*u+3}], v2, s[{sd}:{sd+3}], s{s0} offen{SC}")

def w2_ids(a, sJ, sRB, sR, lab):
    e = a.e
    e("s_and_b32 s53, s2, 7")
    e("s_lshr_b32 s54, s2, 3")
    e(f"s_and_b32 s{sJ}, s53, 3")
    e(f"s_lshl_b32 s{sJ}, s{sJ}, 1")
    e("s_and_b32 s55, s54, 1")
    e(f"s_add_u32 s{sJ}, s{sJ}, s55")
    e(f"s_lshr_b32 s{sRB}, s53, 2")
    e(f"s_lshl_b32 s{sRB}, s{sRB}, 4")
    e("s_lshr_b32 s55, s54, 1")
    e(f"s_add_u32 s{sRB}, s{sRB}, s55")
    e(f"s_sub_u32 s53, s{sWAVE}, 3")
    e("s_lshl_b32 s53, s53, 5")
    e(f"s_add_u32 s{sR}, s53, s{sRB}")
    e(f"s_cmp_ge_u32 s{sWAVE}, 3")
    e(f"s_cbranch_scc1 {lab}_ok")
    e(f"s_add_u32 s{sR}, s{sRB}, 160")
    e(f"s_cmp_eq_u32 s{sWAVE}, 2")
    e(f"s_cbranch_scc1 {lab}_ok")
    e(f"s_movk_i32 s{sR}, 999")
    a.label(f"{lab}_ok")

def pack_w2_issue(a, sJ, sR, L, vt, st=83, sd=40, nt=True):
    e = a.e
    ntf = " nt" if nt else ""
    srd(a, sd, sWD, 4608*576*2)
    sb, sks, s0, s1, s2 = [st+i for i in range(1, 6)]
    sdiv(a, f"s{sks}", f"s{sR}", 9)
    e(f"s_mul_i32 s{s1}, s{sks}, 9")
    e(f"s_sub_u32 s{sb}, s{sR}, s{s1}")
    A = vt
    t0, t1, t2, t3, t4, t5 = vt+8, vt+9, vt+10, vt+11, vt+12, vt+13
    M = sd+4
    e(f"v_lshrrev_b32 v{t0}, 4, v1")
    e(f"s_lshl_b32 s{s0}, s{sks}, 2")
    e(f"v_add_u32 v{t0}, s{s0}, v{t0}")
    e(f"v_mul_u32_u24 v{t1}, 57, v{t0}")
    e(f"v_lshrrev_b32 v{t1}, 9, v{t1}")
    e(f"v_mul_u32_u24 v{t2}, 9, v{t1}")
    e(f"v_sub_u32 v{t0}, v{t0}, v{t2}")
    e(f"v_lshlrev_b32 v{t2}, 2, v{t1}")
    e(f"v_add_u32 v{t3}, v{t2}, v{t1}")
    e(f"v_cmp_gt_u32 vcc, 4, v{t0}")
    e(f"v_mov_b32 v{t4}, 256")
    e("s_nop 0")
    e(f"v_cndmask_b32 v{t2}, v{t3}, v{t2}, vcc")
    e(f"v_cndmask_b32 v{t4}, v{t4}, 0, vcc")
    e(f"v_cmp_eq_u32 s[{M}:{M+1}], 8, v{t0}")
    e(f"v_add_u32 v{t3}, 4, v{t3}")
    e(f"v_and_b32 v{t0}, 3, v{t0}")
    e(f"v_cndmask_b32 v{t2}, v{t2}, v{t3}, s[{M}:{M+1}]")
    e(f"s_mul_i32 s{s0}, s{sJ}, {576*1152}")
    e(f"s_lshl_b32 s{s1}, s{sb}, 7")
    e(f"s_add_u32 s{s0}, s{s0}, s{s1}")
    e(f"v_and_b32 v{t5}, 15, v1")
    e(f"v_lshlrev_b32 v{t5}, 3, v{t5}")
    e(f"v_add_u32 v{t5}, s{s0}, v{t5}")
    e(f"s_movk_i32 s{s2}, 1152")
    for q in range(4):
        e(f"v_add_u32 v{t1}, {q}, v{t2}")
        e(f"v_cndmask_b32 v{t1}, v{t1}, v{t2}, s[{M}:{M+1}]")
        e(f"v_mov_b32 v{t3}, {q}")
        e(f"v_cndmask_b32 v{t3}, v{t0}, v{t3}, s[{M}:{M+1}]")
        e(f"v_lshrrev_b32 v{A+2*q}, 3, v{t1}")
        e(f"v_lshlrev_b32 v{A+2*q}, 6, v{A+2*q}")
        e(f"v_and_b32 v{t1}, 7, v{t1}")
        e(f"v_add3_u32 v{A+2*q}, v{A+2*q}, v{t1}, v{t4}")
        e(f"v_lshl_add_u32 v{A+2*q}, v{t3}, 4, v{A+2*q}")
        e(f"v_add_u32 v{A+2*q+1}, 8, v{A+2*q}")
        for r in range(2):
            jj = 2*q + r
            e(f"v_mad_u32_u24 v{A+jj}, v{A+jj}, s{s2}, v{t5}")
            e(f"buffer_load_dwordx2 v[{L+2*jj}:{L+2*jj+1}], v{A+jj}, s[{sd}:{sd+3}], 0 offen{ntf}")

def pack_w2_finish(a, sJ, sR, L, O, st=80, sd=40):
    e = a.e
    srd_ws(a, sd, WS_W, WS_W_BYTES)
    sb, sks, s0, s1, s2, s3 = [st+i for i in range(1, 7)]
    ssel = st+10
    sdiv(a, f"s{sks}", f"s{sR}", 9)
    e(f"s_mul_i32 s{s1}, s{sks}, 9")
    e(f"s_sub_u32 s{sb}, s{sR}, s{s1}")
    e(f"s_mov_b32 s{ssel}, 0x05040100")
    e(f"s_mov_b32 s{ssel+1}, 0x07060302")
    e(f"s_mul_i32 s{s3}, s{sJ}, {SPLIT_BYTES}")
    for u in range(4):
        for q in range(4):
            e(f"v_perm_b32 v{O+4*u+q}, v{L+2*(2*q+1)+u//2}, v{L+2*(2*q)+u//2}, s{ssel+(u&1)}")
    for u in range(4):
        e(f"s_cmp_lt_u32 s{sb}, 8")
        e(f"s_cselect_b32 s{s1}, s{sb}, {u}")
        e(f"s_cselect_b32 s{s0}, {u}, 4")
        e(f"s_mul_i32 s{s2}, s{s1}, 234")
        e(f"s_add_u32 s{s2}, s{s2}, 72")
        e(f"s_cmp_lt_u32 s{s1}, 4")
        e(f"s_mul_i32 s{s1}, s{s1}, 252")
        e(f"s_cselect_b32 s{s2}, s{s1}, s{s2}")
        e(f"s_cselect_b32 s{s1}, 3, 2")
        if ORDER == 'B':
            e(f"s_mul_i32 s{st+7}, s{s1}, s{sks}")
            e(f"s_lshl_b32 s{st+8}, s{sks}, 1")
            e(f"s_mul_i32 s{st+9}, s{s1}, 9")
            e(f"s_add_u32 s{st+9}, s{st+9}, s{st+8}")
            e(f"s_cmp_lt_u32 s{sks}, 9")
            e(f"s_cselect_b32 s{st+8}, s{st+8}, s{st+9}")
            e(f"s_add_u32 s{st+8}, s{st+8}, 162")
            e(f"s_add_u32 s{st+9}, s{st+7}, 36")
            e(f"s_add_u32 s{st+7}, s{st+7}, 18")
            e(f"s_cmp_lt_u32 s{sks}, 9")
            e(f"s_cselect_b32 s{st+7}, s{st+7}, s{st+9}")
            e(f"s_add_u32 s{st+7}, s{st+7}, 160")
        else:
            e(f"s_mul_i32 s{st+7}, s{s1}, s{sks}")
            e(f"s_add_u32 s{st+7}, s{st+7}, 196")
            e(f"s_lshl_b32 s{st+8}, s{sks}, 1")
            e(f"s_add_u32 s{st+8}, s{st+8}, 162")
        e(f"s_cmp_lt_u32 s{s0}, 2")
        e(f"s_cselect_b32 s{s1}, s{st+8}, s{st+7}")
        e(f"s_add_u32 s{s1}, s{s1}, s{s0}")
        e(f"s_add_u32 s{s1}, s{s1}, s{s2}")
        e(f"s_lshl_b32 s{s1}, s{s1}, 10")
        e(f"s_add_u32 s{s1}, s{s1}, s{s3}")
        e(f"buffer_store_dwordx4 v[{O+4*u}:{O+4*u+3}], v2, s[{sd}:{sd+3}], s{s1} offen{SC}")

def pack_full(a, lab, sP):
    e = a.e
    e(f"s_cmp_ge_u32 s{sP}, 1296")
    e(f"s_cbranch_scc1 {lab}_w2")
    pack_w1_issue(a, sP, 16, 8)
    e("s_waitcnt vmcnt(0)")
    pack_w1_finish(a, lab, 16, 48)
    e(f"s_branch {lab}_end")
    a.label(f"{lab}_w2")
    e(f"s_sub_u32 s47, s{sP}, 1296")
    sdiv(a, "s46", "s47", 162)
    e("s_mul_i32 s48, s46, 162")
    e("s_sub_u32 s47, s47, s48")
    pack_w2_issue(a, 46, 47, 16, 64)
    e("s_waitcnt vmcnt(0)")
    pack_w2_finish(a, 46, 47, 16, 32)
    a.label(f"{lab}_end")

def pack_issue_any(a, lab, sP, L, vt):
    e = a.e
    e(f"s_cmp_ge_u32 s{sP}, 2592")
    e(f"s_cbranch_scc1 {lab}_end")
    e(f"s_cmp_ge_u32 s{sP}, 1296")
    e(f"s_cbranch_scc1 {lab}_w2")
    pack_w1_issue(a, sP, L, vt)
    e(f"s_branch {lab}_end")
    a.label(f"{lab}_w2")
    e(f"s_sub_u32 s47, s{sP}, 1296")
    sdiv(a, "s46", "s47", 162)
    e("s_mul_i32 s48, s46, 162")
    e("s_sub_u32 s47, s47, s48")
    pack_w2_issue(a, 46, 47, L, vt)
    a.label(f"{lab}_end")

def pack_finish_any(a, lab, sP, L, O):
    e = a.e
    e(f"s_cmp_ge_u32 s{sP}, 2592")
    e(f"s_cbranch_scc1 {lab}_end")
    e(f"s_cmp_ge_u32 s{sP}, 1296")
    e(f"s_cbranch_scc1 {lab}_w2")
    pack_w1_finish(a, lab, L, O, sT=sP)
    e(f"s_branch {lab}_end")
    a.label(f"{lab}_w2")
    e(f"s_sub_u32 s47, s{sP}, 1296")
    sdiv(a, "s46", "s47", 162)
    e("s_mul_i32 s48, s46, 162")
    e("s_sub_u32 s47, s47, s48")
    pack_w2_finish(a, 46, 47, L, O)
    a.label(f"{lab}_end")

W1L = 64
ORDER = 'B'
W2L, W2O, W2T = 136, 152, 96
def p0_ln(a, C):
    e = a.e
    srd(a, 36, sX, S*D*2)
    srd_ws(a, 40, WS_XNF, XNF_BYTES)
    X, TMP = 16, 56
    e("v_lshrrev_b32 v4, 3, v1")
    e("v_and_b32 v5, 7, v1")
    e("v_mul_u32_u24 v6, 1152, v4")
    e("v_lshl_add_u32 v6, v5, 4, v6")
    e("s_mul_i32 s52, s2, 9216")
    for i in range(9):
        e(f"buffer_load_dwordx4 v[{X+4*i}:{X+4*i+3}], v6, s[36:39], s52 offen offset:{i*128}")
    e(f"s_cmp_ge_u32 s2, {KV_BYTES//1024}")
    e(f"s_cbranch_scc1 p0_nokv")
    srd_ws(a, 44, WS_KV, KV_BYTES)
    for i in range(4): e(f"v_mov_b32 v{72+i}, 0")
    e("s_lshl_b32 s53, s2, 10")
    e(f"buffer_store_dwordx4 v[72:75], v2, s[44:47], s53 offen{SC}")
    a.label("p0_nokv")
    e("v_lshrrev_b32 v7, 1, v5")
    e("v_lshlrev_b32 v7, 10, v7")
    e("v_and_b32 v8, 1, v5")
    e("v_lshl_add_u32 v7, v8, 3, v7")
    e("s_and_b32 s53, s2, 3")
    e("s_lshl_b32 s53, s53, 3")
    e("v_add_u32 v8, s53, v4")
    e("v_lshl_add_u32 v7, v8, 4, v7")
    e("s_lshr_b32 s53, s2, 2")
    e("s_mul_i32 s53, s53, 36864")
    e("s_waitcnt vmcnt(0)")
    ln_rows(e, X, TMP)
    for i in range(9):
        e(f"buffer_store_dwordx2 v[{X+4*i}:{X+4*i+1}], v7, s[40:43], s53 offen{SC}")
        e(f"buffer_store_dwordx2 v[{X+4*i+2}:{X+4*i+3}], v7, s[40:43], s53 offen offset:512{SC}")
        if i < 8: e("s_add_u32 s53, s53, 4096")

def p0_fold(a, C, sT):
    e = a.e
    sdiv(a, "s52", f"s{sT}", 18)
    e("s_mul_i32 s53, s52, 18")
    e(f"s_sub_u32 s53, s{sT}, s53")
    srd(a, 36, sWQKV, 576*1728*2)
    srd(a, 40, sWPHI, 32*18*18*2)
    srd_ws(a, 44, WS_WPF, WPF_BYTES)
    e("v_and_b32 v13, 31, v1")
    e("v_lshrrev_b32 v4, 5, v1")
    e("v_mul_u32_u24 v5, 3456, v13")
    e("v_lshl_add_u32 v6, v4, 4, v5")
    e(f"s_mul_i32 s54, s53, {32*3456}")
    e("s_mul_i32 s55, s52, 36")
    e("s_add_u32 s54, s54, s55")
    XQ, XK, ZV, YQ, YK = 8+8, 12+8, 16+8, 20+8, 24+8
    e(f"buffer_load_dwordx4 v[{XQ}:{XQ+3}], v6, s[36:39], s54 offen")
    e(f"buffer_load_dwordx4 v[{XK}:{XK+3}], v6, s[36:39], s54 offen offset:1152")
    e(f"buffer_load_dwordx4 v[{ZV}:{ZV+3}], v6, s[36:39], s54 offen offset:2304")
    e(f"buffer_load_dword v{YQ}, v5, s[36:39], s54 offen offset:32")
    e(f"buffer_load_dword v{YK}, v5, s[36:39], s54 offen offset:{1152+32}")
    e(f"buffer_load_dword v{YQ+1}, v5, s[36:39], s54 offen offset:{2304+32}")
    e("v_bfe_u32 v7, v13, 2, 1")
    e("v_lshrrev_b32 v36, 3, v13")
    e("v_and_b32 v37, 3, v13")
    e("v_lshl_add_u32 v36, v36, 2, v37")
    e("v_mul_u32_u24 v37, 9, v7")
    e("v_add_u32 v38, v37, v36")
    e("v_lshlrev_b32 v39, 1, v38")
    e("v_mov_b32 v40, 0x40000000")
    e("v_cmp_gt_u32 vcc, 9, v36")
    e("s_mul_i32 s55, s52, 648")
    e("s_nop 0")
    e("v_cndmask_b32 v39, v40, v39, vcc")
    e("v_mul_u32_u24 v41, 288, v4")
    e("v_add_u32 v41, v41, v39")
    BX, BY0, BY1, BZ0, BZ1 = 44, 48, 52, 56, 60
    for j in range(8):
        e(f"buffer_load_ushort v{112+j}, v41, s[40:43], s55 offen offset:{j*36}")
    e("v_cmp_eq_u32 vcc, 0, v4")
    e("s_nop 1")
    e("v_cndmask_b32 v42, v40, v39, vcc")
    e(f"buffer_load_ushort v120, v42, s[40:43], s55 offen offset:{16*36}")
    e(f"buffer_load_ushort v121, v42, s[40:43], s55 offen offset:{17*36}")
    e("v_add_u32 v64, -9, v38")
    e("v_mov_b32 v65, -100")
    e("v_cmp_lt_u32 vcc, 8, v36")
    e("s_nop 1")
    e("v_cndmask_b32 v66, v65, v64, vcc")
    e("v_add_u32 v64, 7, v64")
    e("v_add_u32 v67, -9, v36")
    e("v_cmp_gt_u32 vcc, 2, v67")
    e("s_nop 1")
    e("v_cndmask_b32 v67, v65, v64, vcc")
    e("v_lshlrev_b32 v68, 3, v4")
    e("v_mov_b32 v69, 0x3f80")
    for (ereg, BZ, BY) in ((66, BZ0, BY0), (67, BZ1, BY1)):
        e(f"v_sub_u32 v70, v{ereg}, v68")
        e("v_and_b32 v71, 1, v70")
        e("v_lshlrev_b32 v71, 4, v71")
        e("v_lshlrev_b32 v71, v71, v69")
        e("v_ashrrev_i32 v70, 1, v70")
        for q in range(4):
            e(f"v_cmp_eq_u32 vcc, {q}, v70")
            e("s_nop 1")
            e(f"v_cndmask_b32 v{BZ+q}, 0, v71, vcc")
        e(f"v_add_u32 v70, -16, v{ereg}")
        e("v_and_b32 v71, 1, v70")
        e("v_lshlrev_b32 v71, 4, v71")
        e("v_lshlrev_b32 v71, v71, v69")
        e("v_ashrrev_i32 v70, 1, v70")
        e("v_or_b32 v70, v70, v4")
        e("v_cmp_eq_u32 vcc, 0, v70")
        e("s_nop 1")
        e(f"v_cndmask_b32 v{BY+1}, 0, v71, vcc")
        e(f"v_mov_b32 v{BY+2}, 0")
        e(f"v_mov_b32 v{BY+3}, 0")
    e("s_waitcnt vmcnt(0)")
    for q in range(4):
        e(f"v_lshl_or_b32 v{BX+q}, v{113+2*q}, 16, v{112+2*q}")
    e(f"v_lshl_or_b32 v{BY0}, v121, 16, v120")
    e(f"v_mov_b32 v{BY1}, v{BY0}")
    e("v_cmp_eq_u32 vcc, 0, v4")
    e(f"v_mov_b32 v{YK+1}, v{YQ+1}")
    e("s_nop 0")
    e(f"v_cndmask_b32 v{YQ}, 0, v{YQ}, vcc")
    e(f"v_cndmask_b32 v{YQ+1}, 0, v{YQ+1}, vcc")
    e(f"v_cndmask_b32 v{YK}, 0, v{YK}, vcc")
    e(f"v_cndmask_b32 v{YK+1}, 0, v{YK+1}, vcc")
    for r in (YQ+2, YQ+3, YK+2, YK+3): e(f"v_mov_b32 v{r}, 0")
    e("s_nop 1")
    T0, T1 = 72, 88
    mf = lambda d, A, B, c: e(f"v_mfma_f32_32x32x16_bf16 v[{d}:{d+15}], v[{A}:{A+3}], v[{B}:{B+3}], {c}")
    mf(T0, XQ, BX, "0"); mf(T1, XK, BX, "0")
    mf(T0, YQ, BY0, f"v[{T0}:{T0+15}]"); mf(T1, YK, BY1, f"v[{T1}:{T1+15}]")
    mf(T0, ZV, BZ0, f"v[{T0}:{T0+15}]"); mf(T1, ZV, BZ1, f"v[{T1}:{T1+15}]")
    e(f"s_mul_i32 s54, s52, {WPF_HEAD}")
    e("s_lshl_b32 s55, s53, 12")
    e("s_add_u32 s54, s54, s55")
    e("s_nop 15")
    for tile, T in ((0, T0), (1, T1)):
        for aa in range(2):
            O = 124 + (tile*2+aa)*4
            for q in range(4):
                e(f"v_cvt_pk_bf16_f32 v{O+q}, v{T+8*aa+2*q}, v{T+8*aa+2*q+1}")
            e(f"buffer_store_dwordx4 v[{O}:{O+3}], v2, s[44:47], s54 offen offset:{(aa*2+tile)*1024}{SC}")

def p0_wo(a, C, sT, lab):
    e = a.e
    sdiv(a, "s52", f"s{sT}", 6)
    e("s_mul_i32 s53, s52, 6")
    e(f"s_sub_u32 s53, s{sT}, s53")
    srd(a, 36, sWO, 576*576*2)
    srd_ws(a, 40, WS_WOF, WOF_BYTES)
    e("v_lshrrev_b32 v4, 4, v1")
    e("v_and_b32 v5, 15, v1")
    e("s_lshl_b32 s54, s52, 5")
    e("v_lshlrev_b32 v5, 1, v5")
    e("v_add_u32 v5, s54, v5")
    e("s_movk_i32 s55, 1152")
    e("s_mul_i32 s54, s53, 12")
    for k3 in range(3):
        e(f"v_add_u32 v6, s54, v4")
        if k3: e(f"v_add_u32 v6, {4*k3}, v6")
        e("v_mul_u32_u24 v7, 57, v6")
        e("v_lshrrev_b32 v7, 9, v7")
        e("v_mul_u32_u24 v8, 9, v7")
        e("v_sub_u32 v6, v6, v8")
        e("v_mul_u32_u24 v7, 72, v7")
        e("v_cmp_eq_u32 s[44:45], 8, v6")
        e("v_and_b32 v8, 3, v6")
        e("v_lshlrev_b32 v8, 2, v8")
        e("v_lshrrev_b32 v9, 2, v6")
        for pos in range(4):
            e(f"v_add_u32 v10, {pos}, v8")
            e(f"v_mov_b32 v11, {16+(pos&1)}")
            e("v_cndmask_b32 v10, v10, v11, s[44:45]")
            e(f"v_mov_b32 v11, {pos>>1}")
            e("v_cndmask_b32 v11, v9, v11, s[44:45]")
            e("v_cmp_lt_u32 vcc, 8, v10")
            e("v_mad_u32_u24 v12, v11, 9, v7")
            e("v_add_u32 v12, v12, v10")
            e("v_add_u32 v13, 27, v12")
            e("v_cndmask_b32 v12, v12, v13, vcc")
            A0_ = 32 + k3*8 + 2*pos
            e(f"v_mad_u32_u24 v{A0_}, v12, s55, v5")
            e(f"v_add_u32 v{A0_+1}, {18*1152}, v{A0_}")
            e(f"buffer_load_ushort v{72+8*k3+2*pos}, v{A0_}, s[36:39], 0 offen")
            e(f"buffer_load_ushort v{72+8*k3+2*pos+1}, v{A0_+1}, s[36:39], 0 offen")
    e("s_mul_i32 s54, s52, 18")
    e("s_mul_i32 s55, s53, 3")
    e("s_add_u32 s54, s54, s55")
    e("s_lshl_b32 s54, s54, 10")
    e("s_waitcnt vmcnt(0)")
    for k3 in range(3):
        for q in range(4):
            e(f"v_lshl_or_b32 v{56+4*k3+q}, v{72+8*k3+2*q+1}, 16, v{72+8*k3+2*q}")
        e(f"buffer_store_dwordx4 v[{56+4*k3}:{59+4*k3}], v2, s[40:43], s54 offen offset:{k3*1024}{SC}")

LDS_C0 = 2*P_BLK + 16
def phase0(a, C):
    e = a.e
    e(f"s_cmp_eq_u32 s{sWAVE}, 0")
    e("s_cbranch_scc0 p0_n0")
    p0_ln(a, C)
    e("s_branch p0_crit")
    a.label("p0_n0")
    e(f"s_cmp_ge_u32 s{sWAVE}, 3")
    e("s_cbranch_scc1 p0_n2")
    e(f"s_sub_u32 s56, s{sWAVE}, 1")
    e("s_lshl_b32 s56, s56, 8")
    e("s_add_u32 s56, s56, s2")
    e("s_branch p0_fold")
    a.label("p0_n2")
    e(f"s_cmp_eq_u32 s{sWAVE}, 3")
    e("s_cbranch_scc0 p0_n3")
    e("s_add_u32 s56, s2, 512")
    e("s_cmp_lt_u32 s2, 64")
    e("s_cbranch_scc1 p0_fold")
    e("s_sub_u32 s56, s2, 64")
    e("s_branch p0_wo")
    a.label("p0_n3")
    e(f"s_cmp_eq_u32 s{sWAVE}, 4")
    e("s_cbranch_scc0 p0_n4")
    e("s_add_u32 s56, s2, 192")
    e("s_cmp_lt_u32 s2, 24")
    e("s_cbranch_scc1 p0_wo")
    e("s_sub_u32 s56, s2, 24")
    e("s_movk_i32 s57, 232")
    e("s_branch p0_pack")
    a.label("p0_n4")
    e(f"s_sub_u32 s56, s{sWAVE}, 5")
    e("s_lshl_b32 s56, s56, 8")
    e("s_add_u32 s56, s56, s2")
    e("s_add_u32 s56, s56, 464")
    e("s_movk_i32 s57, 768")
    a.label("p0_pack")
    e("s_add_u32 s57, s56, s57")
    pack_issue_any(a, "pi0", 56, 16, 144)
    pack_issue_any(a, "pi1", 57, 48, 144)
    e("s_waitcnt vmcnt(0)")
    pack_finish_any(a, "pf0", 56, 16, 80)
    pack_finish_any(a, "pf1", 57, 48, 112)
    stamp(a, C, 1)
    e("s_branch b0_join")
    a.label("p0_fold")
    p0_fold(a, C, 56)
    e("s_branch p0_crit")
    a.label("p0_wo")
    p0_wo(a, C, 56, "p0wo")
    a.label("p0_crit")
    e("s_waitcnt vmcnt(0)")
    e(f"v_mov_b32 v4, {LDS_C0}")
    e("v_mov_b32 v5, 1")
    e("s_mov_b64 exec, 1")
    e("ds_add_u32 v4, v5")
    e("s_mov_b64 exec, -1")
    stamp(a, C, 1)
    e(f"s_cmp_eq_u32 s{sWAVE}, 0")
    e("s_cbranch_scc1 p0_w0")
    a.label("p0_extra")
    e(f"s_sub_u32 s56, s{sWAVE}, 1")
    e("s_lshl_b32 s56, s56, 8")
    e("s_add_u32 s56, s56, s2")
    e("s_add_u32 s56, s56, 2000")
    e("s_cmp_ge_u32 s56, 2592")
    e("s_cbranch_scc1 p0_drain")
    pack_full(a, "pk1", 56)
    a.label("p0_drain")
    e("s_branch b0_join")
    a.label("p0_w0")
    e("s_cmp_lt_u32 s2, 24")
    e("s_cselect_b32 s59, 5, 4")
    a.label("p0_cw")
    e("ds_read_b32 v15, v4")
    e("s_waitcnt lgkmcnt(0)")
    e("v_readfirstlane_b32 s58, v15")
    e("s_cmp_ge_u32 s58, s59")
    e("s_cbranch_scc1 p0_cw_ok")
    e(f"s_cmp_eq_u32 s{sSPIN}, 0")
    e("s_cbranch_scc1 p0_cw_ok")
    e(f"s_sub_u32 s{sSPIN}, s{sSPIN}, 1")
    e("s_sleep 1")
    e("s_branch p0_cw")
    a.label("p0_cw_ok")

def flag_store(a, b, vt=4):
    e = a.e
    srd_ws(a, 32, WS_FL + b*256*FL_STRIDE, 256*FL_STRIDE)
    e(f"s_lshl_b32 s29, s2, {FLSH}")
    e(f"v_mov_b32 v{vt}, s{sTAG}")
    e(f"v_mov_b32 v{vt+1}, 0")
    e("s_mov_b64 exec, 1")
    e(f"buffer_store_dword v{vt}, v{vt+1}, s[32:35], s29 offen{SC}")
    e("s_mov_b64 exec, -1")

K1_PK, K1_V, K1_KP = 73728, 92160, 102912
def phase1(a, C):
    e = a.e
    B, D0, D1, A0, T = 16, 160, 176, 192, 208
    e("s_and_b32 s53, s2, 7")
    e("s_lshr_b32 s54, s2, 3")
    e("s_and_b32 s51, s53, 3")
    e("s_lshl_b32 s51, s51, 1")
    e("s_and_b32 s55, s54, 1")
    e("s_add_u32 s51, s51, s55")
    e("s_lshr_b32 s52, s53, 2")
    e("s_lshl_b32 s52, s52, 4")
    e("s_lshr_b32 s55, s54, 1")
    e("s_add_u32 s52, s52, s55")
    e(f"s_mul_i32 s53, s52, {WPF_HEAD}")
    e(f"s_add_u32 s53, s53, {WS_WPF}")
    srd_ws(a, 36, "s53", WPF_HEAD)
    srd_ws(a, 40, WS_XNF, XNF_BYTES)
    e(f"s_mul_i32 s54, s{sWAVE}, 9216")
    for i in range(9):
        if i % 4 == 0:
            e(f"s_add_u32 s55, s54, {i*1024}")
            e("s_mov_b32 m0, s55")
            e("s_nop 0")
        e(f"buffer_load_dwordx4 v2, s[36:39], s55 offen offset:{(i%4)*1024} lds")
    e("s_barrier")
    RB = 12
    e("s_lshl_b32 s56, s51, 3")
    e(f"s_add_u32 s56, s56, s{sWAVE}")
    e("s_mul_i32 s57, s56, 36864")
    st = {"blk": 0}
    def bload(s):
        while st["blk"] < s//4:
            e("s_add_u32 s57, s57, 4096"); st["blk"] += 1
        r = B + 4*(s % RB)
        e(f"buffer_load_dwordx4 v[{r}:{r+3}], v2, s[40:43], s57 offen offset:{(s%4)*1024}")
    for s in range(RB): bload(s)
    srd_ws(a, 44, WS_PHIQ, PHIQ_BYTES)
    e(f"s_mul_i32 s53, s52, {KV_HEAD}")
    e(f"s_add_u32 s53, s53, {WS_KV}")
    srd_ws(a, 48, "s53", KV_HEAD)
    e(f"s_mov_b32 s58, {hex(f2u(LOG2E))}")
    e("v_add_u32 v14, 0x10000, v2")
    e(f"s_waitcnt vmcnt({RB})")
    e("s_barrier")
    stamp(a, C, 13)
    def aread(s):
        r = A0 + (s%2)*8
        va, off = (2, s*2048) if s < 32 else (14, s*2048-65536)
        e(f"ds_read_b128 v[{r}:{r+3}], v{va} offset:{off}")
        e(f"ds_read_b128 v[{r+4}:{r+7}], v{va} offset:{off+1024}")
    aread(0)
    for s in range(36):
        vm = min(RB-1, 35-s)
        if s < 35:
            aread(s+1)
            e(f"s_waitcnt vmcnt({vm}) lgkmcnt(2)")
        else:
            e("s_waitcnt vmcnt(0) lgkmcnt(0)")
        r = A0 + (s%2)*8
        rb = B + 4*(s % RB)
        c0 = "0" if s == 0 else f"v[{D0}:{D0+15}]"
        c1 = "0" if s == 0 else f"v[{D1}:{D1+15}]"
        e(f"v_mfma_f32_32x32x16_bf16 v[{D0}:{D0+15}], v[{r}:{r+3}], v[{rb}:{rb+3}], {c0}")
        e(f"v_mfma_f32_32x32x16_bf16 v[{D1}:{D1+15}], v[{r+4}:{r+7}], v[{rb}:{rb+3}], {c1}")
        if s + RB < 36: bload(s + RB)
    stamp(a, C, 14)
    e("s_nop 15")
    OQ, OK_ = 16, 28
    softmax9(e, D0, OQ, T, 58)
    e("s_lshl_b32 s54, s56, 5")
    e("s_add_u32 s54, s54, s52")
    e(f"s_mul_i32 s54, s54, {PHIQ_BLK}")
    e(f"buffer_store_dwordx4 v[{OQ}:{OQ+3}], v2, s[44:47], s54 offen{SC}")
    e(f"buffer_store_dwordx4 v[{OQ+4}:{OQ+7}], v2, s[44:47], s54 offen offset:1024{SC}")
    e(f"buffer_store_dword v{OQ+8}, v3, s[44:47], s54 offen offset:2048{SC}")
    softmax9(e, D1, OK_, T, 58)
    e("v_and_b32 v5, 31, v1")
    e("v_lshrrev_b32 v6, 5, v1")
    e(f"s_lshl_b32 s54, s{sWAVE}, 5")
    e("v_add_u32 v7, s54, v5")
    e("v_mul_u32_u24 v8, 72, v7")
    e("v_mad_u32_u24 v8, v6, 36, v8")
    e(f"v_add_u32 v8, {K1_PK}, v8")
    for q in range(4):
        e(f"ds_write2_b32 v8, v{OK_+2*q}, v{OK_+2*q+1} offset0:{2*q} offset1:{2*q+1}")
    e(f"ds_write_b32 v8, v{OK_+8} offset:32")
    OV = 40
    vv = [D0+9+i for i in range(7)] + [D1+9, D1+10]
    e("v_cmp_eq_u32 vcc, 0, v6")
    e("v_mov_b32 v9, 1.0")
    e("s_nop 0")
    e("v_cndmask_b32 v9, 0, v9, vcc")
    for q in range(4):
        e(f"v_cvt_pk_bf16_f32 v{OV+q}, v{vv[2*q]}, v{vv[2*q+1]}")
    e(f"v_cvt_pk_bf16_f32 v{OV+4}, v{vv[8]}, v9")
    e("v_mul_u32_u24 v8, 40, v7")
    e("v_mad_u32_u24 v8, v6, 20, v8")
    e(f"v_add_u32 v8, {K1_V}, v8")
    for q in range(2):
        e(f"ds_write2_b32 v8, v{OV+2*q}, v{OV+2*q+1} offset0:{2*q} offset1:{2*q+1}")
    e(f"ds_write_b32 v8, v{OV+4} offset:16")
    e("v_bfe_u32 v10, v1, 2, 2")
    e("v_lshrrev_b32 v11, 5, v1")
    e("v_lshl_add_u32 v10, v11, 3, v10")
    e(f"s_lshl_b32 s54, s{sWAVE}, 5")
    e("v_add_u32 v10, s54, v10")
    e("v_bfe_u32 v11, v1, 4, 1")
    e("v_and_b32 v12, 3, v1")
    e("v_lshl_add_u32 v11, v11, 2, v12")
    e("v_lshlrev_b32 v11, 3, v11")
    e("v_mad_u32_u24 v12, v10, 40, v11")
    e(f"v_add_u32 v12, {K1_V}, v12")
    e("v_mul_u32_u24 v13, 72, v10")
    e("v_add_u32 v13, v13, v11")
    e(f"v_add_u32 v13, {K1_PK}, v13")
    AV, BP, KD0, KD1 = 48, 64, 96, 112
    e("s_waitcnt lgkmcnt(0)")
    for st_ in range(2):
        for wh in range(2):
            e(f"ds_read_b64_tr_b16 v[{AV+4*st_+2*wh}:{AV+4*st_+2*wh+1}], v12 offset:{(16*st_+4*wh)*40}")
            for ft in range(2):
                r = BP + (st_*2+ft)*4 + 2*wh
                e(f"ds_read_b64_tr_b16 v[{r}:{r+1}], v13 offset:{(16*st_+4*wh)*72 + 64*ft}")
    e("v_and_b32 v5, 31, v1")
    e("v_lshrrev_b32 v6, 5, v1")
    e("v_mul_u32_u24 v6, 640, v6")
    e("v_lshl_add_u32 v6, v5, 2, v6")
    e(f"s_mul_i32 s54, s{sWAVE}, 3840")
    e(f"s_add_u32 s54, s54, {K1_KP}")
    e("v_add_u32 v6, s54, v6")
    e("s_waitcnt lgkmcnt(0)")
    for st_ in range(2):
        for ft, KD in ((0, KD0), (1, KD1)):
            c = "0" if st_ == 0 else f"v[{KD}:{KD+15}]"
            e(f"v_mfma_f32_32x32x16_bf16 v[{KD}:{KD+15}], v[{AV+4*st_}:{AV+4*st_+3}], v[{BP+(st_*2+ft)*4}:{BP+(st_*2+ft)*4+3}], {c}")
    for rnd in range(2):
        vo = 14 + rnd
        e(f"v_add_u32 v7, {512*rnd}, v0")
        e("v_mul_u32_u24 v8, 1821, v7")
        e("v_lshrrev_b32 v8, 16, v8")
        e("v_mul_u32_u24 v9, 36, v8")
        e("v_sub_u32 v9, v7, v9")
        e("v_mul_u32_u24 v8, 160, v8")
        e(f"v_lshl_add_u32 v{vo}, v9, 2, v8")
        e(f"v_add_u32 v{vo}, {K1_KP}, v{vo}")
    e("s_nop 4")
    for r in range(12):
        e(f"ds_write_b32 v6, v{KD0+r} offset:{((r//4)*8 + r%4)*160}")
    e("s_mov_b32 exec_lo, 0xff"); e("s_mov_b32 exec_hi, 0xff")
    for r in range(12):
        e(f"ds_write_b32 v6, v{KD1+r} offset:{((r//4)*8 + r%4)*160 + 128}")
    e("s_mov_b64 exec, -1")
    e("s_waitcnt lgkmcnt(0)")
    stamp(a, C, 15)
    e("s_barrier")
    for rnd in range(2):
        if rnd == 1:
            e(f"s_cmp_ge_u32 s{sWAVE}, 4")
            e("s_cbranch_scc1 p1_other")
        R0 = 16 + 8*rnd
        for w in range(8):
            e(f"ds_read_b32 v{R0+w}, v{14+rnd} offset:{w*3840}")
        e("s_waitcnt lgkmcnt(0)")
        for w in (0, 2, 4, 6): e(f"v_add_f32 v{R0+w}, v{R0+w}, v{R0+w+1}")
        e(f"v_add_f32 v{R0}, v{R0}, v{R0+2}")
        e(f"v_add_f32 v{R0+4}, v{R0+4}, v{R0+6}")
        e(f"v_add_f32 v{R0}, v{R0}, v{R0+4}")
        e(f"v_lshlrev_b32 v7, 2, v0")
        e(f"buffer_atomic_add_f32 v{R0}, v7, s[48:51], 0 offen offset:{2048*rnd}")
    a.label("p1_other")
    e("s_waitcnt vmcnt(0)")
    e(f"v_mov_b32 v4, {LDS_C0+4}")
    e("v_mov_b32 v5, 1")
    e("s_mov_b64 exec, 1")
    e("ds_add_u32 v4, v5")
    e("s_mov_b64 exec, -1")

K2_O = 98304
P2_PQ, P2_WO, P2_WO2, P2_T = 16, 64, 136, 208
def phase2_pre(a, C):
    e = a.e
    e("s_and_b32 s53, s2, 7")
    e("s_lshr_b32 s51, s2, 3")
    e("s_lshr_b32 s52, s51, 2")
    e("s_lshl_b32 s53, s53, 3")
    e("s_add_u32 s52, s52, s53")
    e("s_and_b32 s51, s51, 3")
    srd_ws(a, 44, WS_WOF, WOF_BYTES)
    e("s_mul_i32 s59, s51, 9")
    e(f"s_add_u32 s54, s59, s{sWAVE}")
    e("s_mul_i32 s54, s54, 18432")
    for ks in range(18):
        if ks and ks % 4 == 0: e("s_add_u32 s54, s54, 4096")
        e(f"buffer_load_dwordx4 v[{P2_WO+4*ks}:{P2_WO+4*ks+3}], v2, s[44:47], s54 offen offset:{(ks%4)*1024}")
    e(f"s_cmp_ge_u32 s{sWAVE}, 1")
    e("s_cbranch_scc1 p2_nowo2")
    e("s_add_u32 s54, s59, 8")
    e("s_mul_i32 s54, s54, 18432")
    for ks in range(18):
        if ks and ks % 4 == 0: e("s_add_u32 s54, s54, 4096")
        e(f"buffer_load_dwordx4 v[{P2_WO2+4*ks}:{P2_WO2+4*ks+3}], v2, s[44:47], s54 offen offset:{(ks%4)*1024}")
    a.label("p2_nowo2")

def phase2(a, C):
    e = a.e
    PQ, WO, WO2, T = P2_PQ, P2_WO, P2_WO2, P2_T
    srd_ws(a, 36, WS_KV, KV_BYTES)
    srd_ws(a, 40, WS_PHIQ, PHIQ_BYTES)
    e(f"s_mul_i32 s54, s{sWAVE}, {4*KV_HEAD}")
    e(f"s_mul_i32 s56, s{sWAVE}, 12288")
    e("s_sub_u32 s57, s56, s54")
    for k in range(12):
        if k % 4 == 0:
            e(f"s_add_u32 s55, s54, {k*1024}")
            e("s_add_u32 s58, s55, s57")
            e("s_mov_b32 m0, s58")
            e("s_nop 0")
        e(f"buffer_load_dwordx4 v2, s[36:39], s55 offen offset:{(k%4)*1024} lds")
    e("s_lshl_b32 s54, s52, 5")
    e(f"s_lshl_b32 s55, s{sWAVE}, 2")
    e("s_add_u32 s54, s54, s55")
    e(f"s_mul_i32 s54, s54, {PHIQ_BLK}")
    for i in range(4):
        r = PQ + 12*i
        e(f"buffer_load_dwordx4 v[{r}:{r+3}], v2, s[40:43], s54 offen")
        e(f"buffer_load_dwordx4 v[{r+4}:{r+7}], v2, s[40:43], s54 offen offset:1024")
        e(f"buffer_load_dword v{r+8}, v3, s[40:43], s54 offen offset:2048")
        for z in (9, 10, 11): e(f"v_mov_b32 v{r+z}, 0")
        if i < 3: e(f"s_add_u32 s54, s54, {PHIQ_BLK}")
    e("v_and_b32 v5, 31, v1")
    e("v_lshrrev_b32 v6, 5, v1")
    e("v_bfe_u32 v7, v5, 2, 1")
    e("v_lshrrev_b32 v8, 3, v5")
    e("v_and_b32 v9, 3, v5")
    e("v_lshl_add_u32 v8, v8, 2, v9")
    e("v_mad_u32_u24 v9, v7, 10, v8")
    e("v_mov_b32 v10, 9")
    e("v_cmp_eq_u32 vcc, 9, v8")
    e("s_nop 1")
    e("v_cndmask_b32 v9, v9, v10, vcc")
    e("v_mov_b32 v10, 19")
    e("v_cmp_lt_u32 vcc, 9, v8")
    e("s_nop 1")
    e("v_cndmask_b32 v9, v9, v10, vcc")
    e("v_mul_u32_u24 v9, 144, v9")
    e("v_mad_u32_u24 v9, v6, 64, v9")
    e("v_lshl_add_u32 v9, v6, 3, v9")
    e("v_add_u32 v9, s56, v9")
    F = T; AF = T + 18; DD = AF + 12
    for z in (9, 10, 11): e(f"v_mov_b32 v{AF+z}, 0")
    e("s_waitcnt vmcnt(12)")
    for i in range(4):
        for q in range(9):
            e(f"ds_read_b64 v[{F+2*q}:{F+2*q+1}], v9 offset:{i*KV_HEAD + q*8}")
        e("s_waitcnt lgkmcnt(0)")
        for q in range(9):
            e(f"v_cvt_pk_bf16_f32 v{AF+q}, v{F+2*q}, v{F+2*q+1}")
        e(f"s_waitcnt vmcnt({(3-i)*3})")
        e("s_nop 1")
        r = PQ + 12*i
        e(f"v_mfma_f32_32x32x16_bf16 v[{DD}:{DD+15}], v[{AF}:{AF+3}], v[{r}:{r+3}], 0")
        e(f"v_mfma_f32_32x32x16_bf16 v[{DD}:{DD+15}], v[{AF+4}:{AF+7}], v[{r+4}:{r+7}], v[{DD}:{DD+15}]")
        e(f"v_mfma_f32_32x32x16_bf16 v[{DD}:{DD+15}], v[{AF+8}:{AF+11}], v[{r+8}:{r+11}], v[{DD}:{DD+15}]")
        e("s_nop 15")
        e(f"v_add_f32 v{F}, {hex(f2u(1e-6))}, v{DD+9}")
        e(f"v_rcp_f32 v{F}, v{F}")
        e("s_nop 0")
        for q in range(9):
            e(f"v_mul_f32 v{r+q}, v{DD+q}, v{F}")
    for p in range(2):
        for i in range(9):
            e(f"v_cvt_pk_bf16_f32 v{T+9*p+i}, v{PQ+12*(2*p)+i}, v{PQ+12*(2*p+1)+i}")
    e("v_bfe_u32 v7, v5, 1, 3")
    e("v_mul_u32_u24 v8, 1152, v5")
    e(f"v_add_u32 v8, {K2_O}, v8")
    e(f"s_mul_i32 s54, s{sWAVE}, 9")
    e("v_lshlrev_b32 v9, 2, v6")
    e("v_add_u32 v9, s54, v9")
    for q4 in range(4):
        e(f"v_add_u32 v10, {q4}, v9")
        e("v_xor_b32 v10, v10, v7")
        e("v_lshl_add_u32 v10, v10, 4, v8")
        e(f"ds_write_b128 v10, v[{T+4*q4}:{T+4*q4+3}]")
    e("s_add_u32 s54, s54, 8")
    e("v_xor_b32 v10, s54, v7")
    e("v_lshl_add_u32 v10, v10, 4, v8")
    e("v_lshl_add_u32 v10, v6, 3, v10")
    e(f"ds_write_b64 v10, v[{T+16}:{T+17}]")
    srd(a, 36, sX, S*D*2)
    e("s_mul_i32 s56, s52, 36864")
    e("s_mul_i32 s55, s51, 288")
    e("s_add_u32 s56, s56, s55")
    XR = (16, 20)
    VO = (12, 13); LA = (14, 15)
    for rnd in range(2):
        if rnd == 1: e("v_add_u32 v10, 512, v0")
        else: e("v_mov_b32 v10, v0")
        e("v_mul_u32_u24 v11, 3641, v10")
        e("v_lshrrev_b32 v11, 16, v11")
        e("v_mul_u32_u24 v4, 18, v11")
        e("v_sub_u32 v4, v10, v4")
        e(f"v_mul_u32_u24 v{VO[rnd]}, 1152, v11")
        e(f"v_lshl_add_u32 v{VO[rnd]}, v4, 4, v{VO[rnd]}")
        e(f"v_mul_u32_u24 v{LA[rnd]}, 592, v11")
        e(f"v_lshl_add_u32 v{LA[rnd]}, v4, 5, v{LA[rnd]}")
    e(f"buffer_load_dwordx4 v[{XR[0]}:{XR[0]+3}], v{VO[0]}, s[36:39], s56 offen")
    e(f"s_cmp_ge_u32 s{sWAVE}, 1")
    e("s_cbranch_scc1 p2_nox2")
    e(f"buffer_load_dwordx4 v[{XR[1]}:{XR[1]+3}], v{VO[1]}, s[36:39], s56 offen")
    a.label("p2_nox2")
    e("s_waitcnt lgkmcnt(0)")
    e("s_barrier")
    e("v_and_b32 v5, 15, v1")
    e("v_lshrrev_b32 v6, 4, v1")
    e("v_lshrrev_b32 v7, 1, v5")
    e("v_mul_u32_u24 v8, 1152, v5")
    e(f"v_add_u32 v8, {K2_O}, v8")
    e("v_xor_b32 v9, v6, v7")
    e("v_lshl_add_u32 v10, v9, 4, v8")
    e("v_xor_b32 v9, 4, v9")
    e("v_lshl_add_u32 v11, v9, 4, v8")
    BB = T; AC = T + 16
    def bread(ks):
        for tt in range(2):
            r = BB + (ks%2)*8 + tt*4
            e(f"ds_read_b128 v[{r}:{r+3}], v{10 if ks%2==0 else 11} offset:{tt*18432 + (ks//2)*128}")
    for cls in (0, 1):
        if cls == 0:
            e(f"s_cmp_ge_u32 s{sWAVE}, 1")
            e("s_cbranch_scc1 p2_g1")
        else:
            a.label("p2_g1")
        bread(0)
        for ks in range(18):
            if ks < 17:
                bread(ks+1); e("s_waitcnt lgkmcnt(2)")
            else:
                e("s_waitcnt lgkmcnt(0)")
            for tt in range(2):
                c = "0" if ks == 0 else f"v[{AC+4*tt}:{AC+4*tt+3}]"
                r = BB + (ks%2)*8 + tt*4
                e(f"v_mfma_f32_16x16x32_bf16 v[{AC+4*tt}:{AC+4*tt+3}], v[{WO+4*ks}:{WO+4*ks+3}], v[{r}:{r+3}], {c}")
            if cls == 0:
                for tt in range(2):
                    c = "0" if ks == 0 else f"v[{AC+8+4*tt}:{AC+8+4*tt+3}]"
                    r = BB + (ks%2)*8 + tt*4
                    e(f"v_mfma_f32_16x16x32_bf16 v[{AC+8+4*tt}:{AC+8+4*tt+3}], v[{WO2+4*ks}:{WO2+4*ks+3}], v[{r}:{r+3}], {c}")
        if cls == 0:
            e("s_branch p2_g2")
    a.label("p2_g2")
    e("v_mul_u32_u24 v8, 592, v5")
    e("v_lshl_add_u32 v8, v6, 4, v8")
    e(f"s_lshl_b32 s54, s{sWAVE}, 6")
    e("v_add_u32 v9, s54, v8")
    e("s_nop 7")
    e(f"ds_write_b128 v9, v[{AC}:{AC+3}]")
    e(f"ds_write_b128 v9, v[{AC+4}:{AC+7}] offset:{16*592}")
    e(f"s_cmp_ge_u32 s{sWAVE}, 1")
    e("s_cbranch_scc1 p2_e1")
    e(f"ds_write_b128 v8, v[{AC+8}:{AC+11}] offset:512")
    e(f"ds_write_b128 v8, v[{AC+12}:{AC+15}] offset:{16*592+512}")
    a.label("p2_e1")
    e("s_waitcnt vmcnt(0) lgkmcnt(0)")
    e("s_barrier")
    srd_ws(a, 40, WS_H, WS_H_BYTES)
    for rnd in range(2):
        if rnd == 1:
            e(f"s_cmp_ge_u32 s{sWAVE}, 1")
            e("s_cbranch_scc1 p2_fin")
        e(f"ds_read_b128 v[24:27], v{LA[rnd]}")
        e(f"ds_read_b128 v[28:31], v{LA[rnd]} offset:16")
        X = XR[rnd]
        for q in range(4):
            e(f"v_lshlrev_b32 v{32+2*q}, 16, v{X+q}")
            e(f"v_and_b32 v{33+2*q}, 0xffff0000, v{X+q}")
        e("s_waitcnt lgkmcnt(0)")
        for q in range(8):
            e(f"v_add_f32 v{24+q}, v{24+q}, v{32+q}")
        for q in range(4):
            e(f"v_cvt_pk_bf16_f32 v{40+4*rnd+q}, v{24+2*q}, v{25+2*q}")
        e(f"buffer_store_dwordx4 v[{40+4*rnd}:{43+4*rnd}], v{VO[rnd]}, s[40:43], s56 offen{SC}")
    a.label("p2_fin")

P3_R = 16
P3_B0, P3_RING = 16, 48
P3_ACC = P3_RING + 4*P3_R
P3_TMP = P3_ACC + 80
LDS_CNT = 2*P_BLK
class P3State: pass
def phase3_pre(a, C):
    e = a.e
    st = P3State(); C.p3 = st
    st.soff_base = 0
    e("s_and_b32 s53, s2, 7")
    e("s_lshr_b32 s54, s2, 3")
    e("s_and_b32 s50, s53, 3")
    e("s_lshl_b32 s50, s50, 1")
    e("s_and_b32 s55, s54, 1")
    e("s_add_u32 s50, s50, s55")
    e("s_lshr_b32 s51, s53, 2")
    e("s_lshl_b32 s51, s51, 4")
    e("s_lshr_b32 s55, s54, 1")
    e("s_add_u32 s51, s51, s55")
    e(f"s_mul_i32 s53, s50, {SPLIT_BYTES}")
    e(f"s_add_u32 s53, s53, {WS_W}")
    srd_ws(a, 36, "s53", SPLIT_BYTES)
    e(f"s_mul_i32 s53, s{sWAVE}, 252")
    e(f"s_mul_i32 s54, s{sWAVE}, 234")
    e(f"s_add_u32 s54, s54, 72")
    e(f"s_cmp_lt_u32 s{sWAVE}, 4")
    e(f"s_cselect_b32 s53, s53, s54")
    e(f"s_lshl_b32 s52, s53, 10")
    for n in range(P3_R): p3_issue(a, C, n)

def p3_issue(a, C, n):
    st = C.p3
    while st.soff_base < n // 4:
        a.e("s_add_u32 s52, s52, 4096"); st.soff_base += 1
    r = P3_RING + 4*(n % P3_R)
    a.e(f"buffer_load_dwordx4 v[{r}:{r+3}], v2, s[36:39], s52 offen offset:{(n%4)*1024}")

def lds_wait(a, voff_reg, target, lab):
    e = a.e
    a.label(lab)
    e(f"ds_read_b32 v15, v{voff_reg}")
    e("s_waitcnt lgkmcnt(0)")
    e("v_readfirstlane_b32 s58, v15")
    e(f"s_cmp_ge_u32 s58, {target}")
    e(f"s_cbranch_scc1 {lab}_ok")
    e(f"s_cmp_eq_u32 s{sSPIN}, 0")
    e(f"s_cbranch_scc1 {lab}_ok")
    e(f"s_sub_u32 s{sSPIN}, s{sSPIN}, 1")
    e("s_sleep 1")
    e(f"s_branch {lab}")
    a.label(f"{lab}_ok")

def yprio(a, val, lab):
    a.e(f"s_cmp_lt_u32 s{sWAVE}, 4")
    a.e(f"s_cbranch_scc1 {lab}")
    a.e(f"s_setprio {val}")
    a.label(lab)

def phase3(a, C):
    e = a.e
    R, B0, RING, ACC, TMP = P3_R, P3_B0, P3_RING, P3_ACC, P3_TMP
    vAe, vAo, vAe2, vAo2, vWA, vWB, vWC, vC0, vCA, vCB = 4, 5, 6, 7, 8, 9, 10, 11, 12, 13
    sC1 = 57
    e(f"s_mul_i32 s53, s51, {P_BLK}")
    e(f"s_add_u32 s53, s53, {WS_H}")
    srd_ws(a, 40, "s53", P_BLK)
    e(f"s_lshl_b32 s54, s50, 5")
    e(f"s_add_u32 s54, s54, s51")
    e(f"s_mul_i32 s53, s54, {P_BLK}")
    e(f"s_add_u32 s53, s53, {WS_P}")
    srd_ws(a, 44, "s53", P_BLK)
    X = ACC
    e("v_lshrrev_b32 v12, 3, v0")
    e("v_and_b32 v13, 7, v0")
    e("v_mul_u32_u24 v14, 1152, v12")
    e("v_lshl_add_u32 v15, v13, 4, v14")
    for i in range(9):
        e(f"buffer_load_dwordx4 v[{X+4*i}:{X+4*i+3}], v15, s[40:43], 0 offen offset:{i*128}")
    e("v_bfe_u32 v4, v12, 1, 3")
    e("v_xor_b32 v4, v4, v13")
    e(f"v_lshl_add_u32 v{TMP+20}, v4, 4, v14")
    e(f"v_mov_b32 v{vCA}, {LDS_CNT}")
    e(f"v_mov_b32 v{vCB}, {LDS_CNT+4}")
    e("v_mov_b32 v14, 0")
    e(f"ds_write_b32 v{vCA}, v14")
    e(f"ds_write_b32 v{vCB}, v14")
    e("v_and_b32 v14, 15, v1")
    e("v_lshrrev_b32 v15, 4, v1")
    e(f"v_lshrrev_b32 v{TMP}, 1, v14")
    e(f"v_mul_u32_u24 v{TMP+1}, 1152, v14")
    e(f"v_xor_b32 v14, v15, v{TMP}")
    e(f"v_lshl_add_u32 v{vAe}, v14, 4, v{TMP+1}")
    e("v_xor_b32 v14, 4, v14")
    e(f"v_lshl_add_u32 v{vAo}, v14, 4, v{TMP+1}")
    e(f"v_add_u32 v{vAe2}, {P_BLK}, v{vAe}")
    e(f"v_add_u32 v{vAo2}, {P_BLK}, v{vAo}")
    e(f"s_mul_i32 s53, s{sWAVE}, 9")
    e(f"v_add_u32 v{TMP+1}, {P_BLK}, v{TMP+1}")
    e(f"v_add_u32 v14, s53, v15")
    e(f"v_xor_b32 v14, v14, v{TMP}")
    e(f"v_lshl_add_u32 v{vWA}, v14, 4, v{TMP+1}")
    e(f"s_add_u32 s53, s53, 4")
    e(f"v_add_u32 v14, s53, v15")
    e(f"v_xor_b32 v14, v14, v{TMP}")
    e(f"v_lshl_add_u32 v{vWB}, v14, 4, v{TMP+1}")
    e(f"s_add_u32 s53, s53, 4")
    e(f"v_xor_b32 v14, s53, v{TMP}")
    e(f"v_lshl_add_u32 v14, v14, 4, v{TMP+1}")
    e(f"v_lshl_add_u32 v{vWC}, v15, 2, v14")
    e(f"v_mov_b32 v{vC0}, {hex(f2u(GC0))}")
    e(f"s_mov_b32 s{sC1}, {hex(f2u(GC1))}")
    e("s_waitcnt vmcnt(0)")
    stamp(a, C, 7)
    ln_rows(e, X, TMP)
    for i in range(9):
        e(f"ds_write_b128 v{TMP+20}, v[{X+4*i}:{X+4*i+3}] offset:{i*128}")
    e("s_waitcnt lgkmcnt(0)")
    e("s_barrier")
    stamp(a, C, 8)

    def bread(buf, ks, ve, vo):
        for tt in range(4):
            r = B0 + buf*16 + tt*4
            v = ve if ks % 2 == 0 else vo
            e(f"ds_read_b128 v[{r}:{r+3}], v{v} offset:{tt*18432 + (ks//2)*128}")

    def gemm_group(n0, nu, ve, vo, total, acc0=0, sync=None, w2gate=False):
        if sync: sync(0)
        bread(0, 0, ve, vo)
        n = n0
        for ks in range(18):
            cur = ks % 2
            if ks < 17:
                if sync: sync(ks+1)
                bread(1-cur, ks+1, ve, vo)
                lg = 4
            else:
                lg = 0
            for u in range(nu):
                slot = n % R
                outstanding_after = min(total - 1 - n, R - 1)
                w = f"s_waitcnt vmcnt({outstanding_after})"
                if u == 0: w += f" lgkmcnt({lg})"
                e(w)
                ra = RING + 4*slot
                for tt in range(4):
                    acc = ACC + ((acc0+u)*4+tt)*4
                    rb_ = B0 + cur*16 + tt*4
                    c = "0" if ks == 0 else f"v[{acc}:{acc+3}]"
                    e(f"v_mfma_f32_16x16x32_bf16 v[{acc}:{acc+3}], v[{ra}:{ra+3}], v[{rb_}:{rb_+3}], {c}")
                if n + R < total:
                    if w2gate and n + R == 162:
                        e(f"v_mov_b32 v14, {LDS_C0+8}")
                        lds_wait(a, 14, 1, "p3_w2g")
                    p3_issue(a, C, n + R)
                n += 1
        return n

    def gelu(us, vaddr, width):
        for tt in range(4):
            els = [(u, r) for u in us for r in range(2)]
            nE = len(els)
            T1, T2 = TMP, TMP + 8
            Dw = TMP + 16 + (tt%2)*4
            G = lambda u, r: ACC + (u*4+tt)*4 + r
            Uu = lambda u, r: ACC + (u*4+tt)*4 + 2 + r
            for i, (u, r) in enumerate(els): e(f"v_mul_f32 v{T1+i}, v{G(u,r)}, v{G(u,r)}")
            for i, (u, r) in enumerate(els): e(f"v_fma_f32 v{T1+i}, v{T1+i}, s{sC1}, v{vC0}")
            for i, (u, r) in enumerate(els): e(f"v_mul_f32 v{T1+i}, v{T1+i}, v{G(u,r)}")
            for i, (u, r) in enumerate(els): e(f"v_exp_f32 v{T1+i}, v{T1+i}")
            for i, (u, r) in enumerate(els): e(f"v_mul_f32 v{T2+i}, v{G(u,r)}, v{Uu(u,r)}")
            for i, (u, r) in enumerate(els): e(f"v_add_f32 v{T1+i}, 1.0, v{T1+i}")
            for i, (u, r) in enumerate(els): e(f"v_rcp_f32 v{T1+i}, v{T1+i}")
            if nE < 4: e("s_nop 0")
            for i, (u, r) in enumerate(els): e(f"v_mul_f32 v{T2+i}, v{T2+i}, v{T1+i}")
            for k in range(nE//2): e(f"v_cvt_pk_bf16_f32 v{Dw+k}, v{T2+2*k}, v{T2+2*k+1}")
            if width == 4: e(f"ds_write_b128 v{vaddr}, v[{Dw}:{Dw+3}] offset:{tt*18432}")
            else: e(f"ds_write_b32 v{vaddr}, v{Dw} offset:{tt*18432}")

    BIG = 10**9
    n = gemm_group(0, 4, vAe, vAo, BIG)
    e("s_nop 7")
    gelu([0,1,2,3], vWA, 4)
    if C.prio in (1, 2): yprio(a, 1, "yp1")
    n = gemm_group(n, 5, vAe, vAo, BIG)
    if C.prio == 1: yprio(a, 0, "yp2")
    e("s_nop 7")
    gelu([0,1,2,3], vWB, 4)
    gelu([4], vWC, 1)
    e("s_waitcnt lgkmcnt(0)")
    e(f"s_cmp_lt_u32 s{sWAVE}, 4")
    e(f"s_cselect_b32 s58, 0, 4")
    e(f"s_add_u32 s58, s58, {LDS_CNT}")
    e("v_mov_b32 v14, s58")
    e("v_mov_b32 v15, 1")
    e("s_mov_b64 exec, 1")
    e("ds_add_u32 v14, v15")
    e("s_mov_b64 exec, -1")
    stamp(a, C, 9)
    assert n == 162
    saved = st_save = C.p3.soff_base
    e(f"s_cmp_ge_u32 s{sWAVE}, 4")
    e("s_cbranch_scc1 p3_c1")
    for cls in (0, 1):
        if cls == 1:
            a.label("p3_c1")
            C.p3.soff_base = saved
        total = 252 if cls == 0 else 234
        nt2 = 3 if cls == 0 else 2
        st2 = {"n": 162, "stores_after": None, "nst": 0}
        def seg(ks0, nu, acc0, first):
            bread(0, ks0, vAe2, vAo2)
            for k in range(9):
                ks = ks0 + k
                cur = k % 2
                if k < 8:
                    bread(1-cur, ks+1, vAe2, vAo2); lg = 4
                else: lg = 0
                for u in range(nu):
                    n = st2["n"]
                    slot = n % R
                    after = min(total - 1 - n, R - 1)
                    if st2["stores_after"] is not None and n <= st2["stores_after"]: after += st2["nst"]
                    w = f"s_waitcnt vmcnt({after})"
                    if u == 0: w += f" lgkmcnt({lg})"
                    e(w)
                    ra = RING + 4*slot
                    for tt in range(4):
                        acc = ACC + ((acc0+u)*4+tt)*4
                        rb_ = B0 + cur*16 + tt*4
                        c = "0" if (first and k == 0) else f"v[{acc}:{acc+3}]"
                        e(f"v_mfma_f32_16x16x32_bf16 v[{acc}:{acc+3}], v[{ra}:{ra+3}], v[{rb_}:{rb_+3}], {c}")
                    if n + R < total:
                        p3_issue(a, C, n + R)
                    st2["n"] = n + 1
        lds_wait(a, vCA, 4, f"p3_wa{cls}")
        seg(0, 2, 0, True)
        if C.order == 'B': seg(0, nt2, 2, True)
        lds_wait(a, vCB, 4, f"p3_wb{cls}")
        if C.prio == 1 and cls == 1: e("s_setprio 1")
        seg(9, 2, 0, False)
        e(f"s_lshl_b32 s53, s{sWAVE}, 13")
        e("s_nop 7")
        for tt in range(4):
            Dw = TMP + tt*4
            for r in range(4):
                e(f"v_cvt_pk_bf16_f32 v{Dw+r}, v{ACC+(0*4+tt)*4+r}, v{ACC+(1*4+tt)*4+r}")
            e(f"buffer_store_dwordx4 v[{Dw}:{Dw+3}], v2, s[44:47], s53 offen offset:{tt*1024}{SC}")
        st2["stores_after"] = min(total - 1, st2["n"] - 1 + R); st2["nst"] = 4
        if C.order == 'A': seg(0, nt2, 2, True)
        seg(9, nt2, 2, False)
        assert st2["n"] == total
        e("s_nop 7")
        e(f"s_add_u32 s53, s53, 4096")
        for tt in range(4):
            Dw = TMP + tt*4
            for r in range(4):
                e(f"v_cvt_pk_bf16_f32 v{Dw+r}, v{ACC+(2*4+tt)*4+r}, v{ACC+(3*4+tt)*4+r}")
            e(f"buffer_store_dwordx4 v[{Dw}:{Dw+3}], v2, s[44:47], s53 offen offset:{tt*1024}{SC}")
        if cls == 0:
            e(f"s_lshl_b32 s53, s{sWAVE}, 2")
            e(f"s_add_u32 s53, s53, 65536")
            for tt in range(4):
                for rp in range(2):
                    Dw = TMP + 16 + tt*2 + rp
                    e(f"v_cvt_pk_bf16_f32 v{Dw}, v{ACC+(4*4+tt)*4+2*rp}, v{ACC+(4*4+tt)*4+2*rp+1}")
                    if (tt*2+rp) % 4 == 0 and (tt*2+rp) > 0: e("s_add_u32 s53, s53, 4096")
                    e(f"buffer_store_dword v{Dw}, v2, s[44:47], s53 offen offset:{((tt*2+rp)%4)*1024}{SC}")
            e("s_branch p3_end")
    a.label("p3_end")
    if C.prio: e("s_setprio 0")

def phase4(a, C):
    e = a.e
    srd_ws(a, 36, WS_P, WS_P_BYTES)
    srd_ws(a, 40, WS_H, WS_H_BYTES)
    srd(a, 44, sOUT, S*D*2)
    e(f"s_mul_i32 s53, s51, {P_BLK}")
    e("s_lshl_b32 s54, s50, 13")
    e("s_add_u32 s55, s53, s54")
    e(f"s_and_b32 s54, s{sWAVE}, 1")
    e("s_lshl_b32 s54, s54, 12")
    e("s_add_u32 s55, s55, s54")
    e(f"s_lshr_b32 s54, s{sWAVE}, 1")
    e("s_lshl_b32 s56, s54, 10")
    e("s_add_u32 s55, s55, s56")
    for src in range(8):
        e(f"buffer_load_dwordx4 v[{16+4*src}:{19+4*src}], v2, s[36:39], s55 offen")
        if src < 7: e(f"s_add_u32 s55, s55, {32*P_BLK}")
    e("v_and_b32 v5, 15, v1")
    e("v_lshrrev_b32 v6, 4, v1")
    e("v_mul_u32_u24 v7, 1152, v5")
    e("v_lshl_add_u32 v7, v6, 5, v7")
    e("s_lshl_b32 s56, s51, 6")
    e("s_lshl_b32 s57, s54, 4")
    e("s_add_u32 s56, s56, s57")
    e("s_mul_i32 s56, s56, 1152")
    e("s_lshl_b32 s57, s50, 7")
    e("s_add_u32 s56, s56, s57")
    e(f"s_and_b32 s57, s{sWAVE}, 1")
    e("s_lshl_b32 s57, s57, 4")
    e("s_add_u32 s56, s56, s57")
    e("buffer_load_dwordx4 v[48:51], v7, s[40:43], s56 offen")
    e(f"s_cmp_lg_u32 s{sWAVE}, 0")
    e("s_cbranch_scc1 p4_ns")
    e("s_lshl_b32 s57, s50, 10")
    e("s_add_u32 s57, s57, s53")
    e("s_add_u32 s57, s57, 65536")
    for src in range(8):
        e(f"buffer_load_dwordx4 v[{64+4*src}:{67+4*src}], v2, s[36:39], s57 offen")
        if src < 7: e(f"s_add_u32 s57, s57, {32*P_BLK}")
    e("s_lshl_b32 s57, s51, 6")
    e("s_lshr_b32 s58, s50, 1")
    e("s_lshl_b32 s58, s58, 4")
    e("s_add_u32 s57, s57, s58")
    e("s_mul_i32 s57, s57, 1152")
    e("s_and_b32 s58, s50, 1")
    e("s_lshl_b32 s58, s58, 4")
    e("s_add_u32 s57, s57, s58")
    e("s_add_u32 s57, s57, 1024")
    e("buffer_load_dwordx4 v[96:99], v7, s[40:43], s57 offen")
    e("s_waitcnt vmcnt(9)")
    e("s_branch p4_j")
    a.label("p4_ns")
    e("s_waitcnt vmcnt(0)")
    a.label("p4_j")
    for r in range(4):
        e(f"v_lshlrev_b32 v{100+2*r}, 16, v{16+r}")
        e(f"v_and_b32 v{101+2*r}, 0xffff0000, v{16+r}")
    for src in range(1, 8):
        for r in range(4):
            x = 16 + 4*src + r
            e(f"v_lshlrev_b32 v{108+2*(r%2)}, 16, v{x}")
            e(f"v_and_b32 v{109+2*(r%2)}, 0xffff0000, v{x}")
            e(f"v_add_f32 v{100+2*r}, v{100+2*r}, v{108+2*(r%2)}")
            e(f"v_add_f32 v{101+2*r}, v{101+2*r}, v{109+2*(r%2)}")
    e(f"s_lshl_b32 s57, s{sWAVE}, 11")
    e("v_lshlrev_b32 v8, 5, v1")
    e("v_add_u32 v9, s57, v8")
    e("ds_write_b128 v9, v[100:103]")
    e("ds_write_b128 v9, v[104:107] offset:16")
    e("s_waitcnt lgkmcnt(0)")
    e("s_barrier")
    e(f"s_and_b32 s58, s{sWAVE}, 6")
    e("s_lshl_b32 s58, s58, 11")
    e(f"s_and_b32 s57, s{sWAVE}, 1")
    e("s_lshl_b32 s57, s57, 4")
    e("s_add_u32 s58, s58, s57")
    e("v_add_u32 v9, s58, v8")
    e("ds_read_b128 v[100:103], v9")
    e("ds_read_b128 v[104:107], v9 offset:2048")
    for q in range(4):
        e(f"v_lshlrev_b32 v{108+2*q}, 16, v{48+q}")
        e(f"v_and_b32 v{109+2*q}, 0xffff0000, v{48+q}")
    e("s_waitcnt lgkmcnt(0)")
    src = [100, 101, 104, 105, 102, 103, 106, 107]
    for q in range(8):
        e(f"v_add_f32 v{108+q}, v{108+q}, v{src[q]}")
    for q in range(4):
        e(f"v_cvt_pk_bf16_f32 v{116+q}, v{108+2*q}, v{109+2*q}")
    e("buffer_store_dwordx4 v[116:119], v7, s[44:47], s56 offen")
    e(f"s_cmp_lg_u32 s{sWAVE}, 0")
    e("s_cbranch_scc1 p4_end")
    e("s_waitcnt vmcnt(1)")
    for q in range(4):
        e(f"v_lshlrev_b32 v{120+2*q}, 16, v{96+q}")
        e(f"v_and_b32 v{121+2*q}, 0xffff0000, v{96+q}")
    for src_ in range(8):
        for u in range(4):
            x = 64+4*src_+u
            e(f"v_lshlrev_b32 v{128+2*(u%2)}, 16, v{x}")
            e(f"v_and_b32 v{129+2*(u%2)}, 0xffff0000, v{x}")
            e(f"v_add_f32 v{120+u}, v{120+u}, v{128+2*(u%2)}")
            e(f"v_add_f32 v{124+u}, v{124+u}, v{129+2*(u%2)}")
    for q in range(4):
        e(f"v_cvt_pk_bf16_f32 v{132+q}, v{120+2*q}, v{121+2*q}")
    e("s_lshl_b32 s57, s51, 6")
    e("s_lshr_b32 s58, s50, 1")
    e("s_lshl_b32 s58, s58, 4")
    e("s_add_u32 s57, s57, s58")
    e("s_mul_i32 s57, s57, 1152")
    e("s_and_b32 s58, s50, 1")
    e("s_lshl_b32 s58, s58, 4")
    e("s_add_u32 s57, s57, s58")
    e("s_add_u32 s57, s57, 1024")
    e("buffer_store_dwordx4 v[132:135], v7, s[44:47], s57 offen")
    a.label("p4_end")

LDS_TOTAL = 2*P_BLK + 256
NAME = "sequential_preLN__linear_kernel_hedgehog__geglu_ffn__prompt_kernel"
def build(fname, ts=False, spin=2000000, codepf=False, prio=0, order='A', fls=32, sleep=2, wsoff=0):
    global FLS, FLSH, SLEEP
    FLS = fls; FLSH = int(math.log2(fls)); SLEEP = sleep
    C = Ctx(ts, prio, order)
    global ORDER
    ORDER = order
    a = Asm()
    a(HEADER.rstrip())
    a(f"; @launch grid=(256,1,1) block=(512,1,1) lds={LDS_TOTAL}")
    a('.amdgcn_target "amdgcn-amd-amdhsa--gfx950"')
    a(".text")
    kernel_begin(a, NAME)
    e = a.e
    e("s_cmp_ge_u32 s2, 256")
    e("s_cbranch_scc1 k_done")
    stamp(a, C, 0)
    e("s_load_dwordx8 s[4:11], s[0:1], 0")
    e("s_load_dwordx8 s[12:19], s[0:1], 32")
    e("s_load_dwordx4 s[20:23], s[0:1], 64")
    e("s_load_dwordx2 s[24:25], s[0:1], 80")
    e("v_lshrrev_b32 v4, 6, v0")
    e("v_and_b32 v1, 63, v0")
    e(f"v_readfirstlane_b32 s{sWAVE}, v4")
    e("v_lshlrev_b32 v2, 4, v1")
    e("v_lshlrev_b32 v3, 2, v1")
    e(f"s_mov_b32 s{sSPIN}, {spin}")
    e(f"v_mov_b32 v4, {LDS_C0}")
    e("v_mov_b32 v5, 0")
    e("v_mov_b32 v6, 0")
    e("ds_write2_b32 v4, v5, v6 offset0:0 offset1:1")
    e("ds_write2_b32 v4, v5, v6 offset0:2 offset1:3")
    e("s_waitcnt lgkmcnt(0)")
    if wsoff:
        e(f"s_add_u32 s{sWS}, s{sWS}, {hex(wsoff)}")
        e(f"s_addc_u32 s{sWS+1}, s{sWS+1}, 0")
    e("s_barrier")
    if codepf:
        e(f"s_cmp_lt_u32 s{sWAVE}, 5")
        e("s_cbranch_scc1 nocpf")
        e("s_getpc_b64 s[30:31]")
        a.label("cpf_pc")
        e(f"s_sub_u32 s29, s{sWAVE}, 5")
        e("s_mul_i32 s29, s29, 0x6000")
        e("v_lshlrev_b32 v4, 7, v1")
        e("v_add_u32 v4, s29, v4")
        e("s_mov_b32 s29, k_code_end-cpf_pc")
        for i in range(3):
            e("v_cmp_gt_u32 vcc, s29, v4")
            e("s_and_saveexec_b64 s[32:33], vcc")
            e(f"s_cbranch_execz cpf_skip{i}")
            e(f"global_load_dword v{5+i}, v4, s[30:31]")
            a.label(f"cpf_skip{i}")
            e("s_mov_b64 exec, s[32:33]")
            e("v_add_u32 v4, 0x2000, v4")
        a.label("nocpf")
    e(f"s_add_u32 s30, s{sWS}, {hex(WS_TAG)}")
    e(f"s_addc_u32 s31, s{sWS+1}, 0")
    e(f"s_cmp_lg_u32 s{sWAVE}, 0")
    e("s_cbranch_scc1 notag")
    e(f"s_load_dword s{sTAG}, s[30:31], 0")
    a.label("notag")
    phase0(a, C)
    e("s_waitcnt lgkmcnt(0)")
    e(f"s_mul_i32 s{sTAG}, s{sTAG}, 1664525")
    e(f"s_add_u32 s{sTAG}, s{sTAG}, 1013904223")
    stamp(a, C, 1)
    flag_store(a, 0)
    poll_all(a, 0, "b0_p")
    a.label("b0_join")
    e("s_barrier")
    stamp(a, C, 2)
    phase1(a, C)
    stamp(a, C, 3)
    e(f"s_cmp_lg_u32 s{sWAVE}, 0")
    e("s_cbranch_scc1 b1_ns")
    e(f"v_mov_b32 v4, {LDS_C0+4}")
    lds_wait(a, 4, 8, "b1_cw")
    flag_store(a, 1)
    a.label("b1_ns")
    phase2_pre(a, C)
    e(f"s_cmp_lg_u32 s{sWAVE}, 0")
    e("s_cbranch_scc1 b1_join")
    poll_all(a, 1, "b1_p")
    e("s_cmp_lg_u32 s2, 0")
    e("s_cbranch_scc1 b1_join")
    srd_ws(a, 32, WS_TAG, 4)
    e(f"v_mov_b32 v4, s{sTAG}")
    e("v_mov_b32 v5, 0")
    e("s_mov_b64 exec, 1")
    e(f"buffer_store_dword v4, v5, s[32:35], 0 offen{SC}")
    e("s_mov_b64 exec, -1")
    a.label("b1_join")
    e("s_barrier")
    stamp(a, C, 4)
    phase2(a, C)
    stamp(a, C, 5)
    signal(a, 2, "b2_s")
    phase3_pre(a, C)
    e(f"s_cmp_lg_u32 s{sWAVE}, 0")
    e("s_cbranch_scc1 b2_join")
    e("s_lshr_b32 s53, s51, 2")
    e("s_and_b32 s54, s51, 3")
    e("s_lshl_b32 s54, s54, 6")
    e("s_add_u32 s53, s53, s54")
    poll_list(a, 2, 53, 8, 8, "b2_p")
    a.label("b2_join")
    e("s_barrier")
    stamp(a, C, 6)
    if prio == 3: yprio(a, 1, "yp0")
    phase3(a, C)
    stamp(a, C, 10)
    signal(a, 3, "b3_s")
    e(f"s_cmp_lg_u32 s{sWAVE}, 0")
    e("s_cbranch_scc1 b3_join")
    srd_ws(a, 32, WS_FL + 3*256*FL_STRIDE, 256*FL_STRIDE)
    e("s_lshr_b32 s53, s51, 4")
    e("s_lshl_b32 s53, s53, 2")
    e("s_and_b32 s54, s51, 15")
    e("s_lshl_b32 s54, s54, 4")
    e("s_add_u32 s53, s53, s54")
    e(f"s_lshl_b32 s53, s53, {FLSH}")
    e("v_lshrrev_b32 v4, 1, v1")
    e("v_and_b32 v5, 1, v1")
    e("v_lshl_add_u32 v4, v5, 3, v4")
    e(f"v_lshlrev_b32 v4, {FLSH}, v4")
    poll_few(a, "b3_p", 4, 53, 8)
    a.label("b3_join")
    e("s_barrier")
    stamp(a, C, 11)
    phase4(a, C)
    if ts:
        e("s_waitcnt vmcnt(0)")
        stamp(a, C, 12)
        e("s_waitcnt lgkmcnt(0)")
        srd_ws(a, 32, WS_TS, 0x100000)
        e("s_lshl_b32 s53, s2, 3")
        e(f"s_add_u32 s53, s53, s{sWAVE}")
        e("s_lshl_b32 s53, s53, 6")
        for i in range(16): e(f"v_mov_b32 v{16+i}, s{60+2*i}" if i < 13 else f"v_mov_b32 v{16+i}, s{96+2*(i-13)}")
        e("v_mov_b32 v4, 0")
        e("s_mov_b64 exec, 1")
        for q in range(4):
            e(f"buffer_store_dwordx4 v[{16+4*q}:{19+4*q}], v4, s[32:35], s53 offen offset:{16*q}")
    a.label("k_done")
    e("s_endpgm")
    a.label("k_code_end")
    a('.section .rodata,"a"')
    a(".p2align 6")
    a(kernel_desc(NAME, 256, 102, 256))
    open(fname, "w").write(a.text())

if __name__ == "__main__":
    build("mega_ts.s", ts=True, spin=20000, prio=2, fls=64, sleep=4)
    build("mega.s", ts=False, prio=2, fls=64, sleep=4)
    build("../cdna_kernels/v_w0.s", ts=False, prio=2, fls=64, sleep=4)
    build("../cdna_kernels/v_w192.s", ts=False, prio=2, fls=64, sleep=4, wsoff=0xC000000)
    build("../cdna_kernels/v_w96.s", ts=False, prio=2, fls=64, sleep=4, wsoff=0x6000000)
```
